```python
import torch

def _softmax(x, axis=-1):
    return torch.softmax(x, dim=axis)
def _gelu(x):
    return torch.nn.functional.gelu(x, approximate="tanh")
def _silu(x):
    return torch.nn.functional.silu(x)
def _sigmoid(x):
    return torch.sigmoid(x)
def _layernorm(x, axis=-1, eps=1e-5):
    m = x.mean(dim=axis, keepdim=True)
    v = x.var(dim=axis, keepdim=True, unbiased=False)
    return (x - m) / torch.sqrt(v + eps)
def _scatter_add(tgt, idx, src, axis=0):
    return tgt.clone().index_add_(axis, idx, src)
def _segment_sum(src, seg, n):
    out = torch.zeros((n,) + src.shape[1:], dtype=src.dtype)
    return out.index_add_(0, seg, src)
def _pad(x, pw):
    flat = tuple(v for pair in reversed(pw) for v in pair)
    return torch.nn.functional.pad(x, flat)

kernel_name = 'concat_heads__linear_kernel_hedgehog__linear_attn_block__prompt'

def setup_inputs():

    _w = (lambda a: (lambda t: t.to(torch.bfloat16) if t.is_floating_point() else t)(torch.as_tensor(a)))
    def _A_setup():
        B, S, D, H = 1, 2048, 512, 32
        Dh = D // H
        return {
            "x": _w((lambda *s: torch.randn(*s, dtype=torch.bfloat16) * 0.4)(B, S, D)),
            "wqkv": _w((lambda *s: torch.randn(*s, dtype=torch.bfloat16) * 0.4)(D, 3 * D)),
            "w_phi": _w((lambda *s: torch.randn(*s, dtype=torch.bfloat16) * 0.4)(H, Dh, Dh) * (Dh ** -0.5)),
            "wo": _w((lambda *s: torch.randn(*s, dtype=torch.bfloat16) * 0.05)(D, D)),
        }
    _A_in = _A_setup()

    def _B_setup():
        B, S, D = 1, 2048, 512
        return {
            "x": _w((lambda *s: torch.randn(*s, dtype=torch.bfloat16) * 0.05)(B, S, D)),
            "wqkv": _w((lambda *s: torch.randn(*s, dtype=torch.bfloat16) * 0.8)(D, 3 * D)),
            "wo": _w((lambda *s: torch.randn(*s, dtype=torch.bfloat16) * 0.4)(D, D)),
        }
    _B_in = _B_setup()

    return {
        "A_x": _A_in["x"],
        "A_wqkv": _A_in["wqkv"],
        "A_w_phi": _A_in["w_phi"],
        "A_wo": _A_in["wo"],
        "B_x": _B_in["x"],
        "B_wqkv": _B_in["wqkv"],
        "B_wo": _B_in["wo"],
    }

def reference(A_x, A_wqkv, A_w_phi, A_wo, B_x, B_wqkv, B_wo):
    def _A_ref(x, wqkv, w_phi, wo):
        B, S, D = x.shape
        H = 32; Dh = D // H
        qkv = (lambda x, *d: x.permute(*d))((x @ wqkv).reshape(B, S, 3, H, Dh), 2, 0, 3, 1, 4)
        q, k, v = qkv[0], qkv[1], qkv[2]
        pq = torch.einsum("bhsd,hdf->bhsf", q, w_phi)
        pk = torch.einsum("bhsd,hdf->bhsf", k, w_phi)
        phi_q = torch.concatenate([_softmax(pq, axis=-1), _softmax(-pq, axis=-1)], axis=-1)
        phi_k = torch.concatenate([_softmax(pk, axis=-1), _softmax(-pk, axis=-1)], axis=-1)
        kv = torch.einsum("bhsf,bhsd->bhfd", phi_k, v)
        z  = torch.einsum("bhsf->bhf", phi_k)
        num = torch.einsum("bhqf,bhfd->bhqd", phi_q, kv)
        den = torch.einsum("bhqf,bhf->bhq", phi_q, z)[..., None] + 1e-6
        o = num / den
        return (lambda x, *d: x.permute(*d))(o, 0, 2, 1, 3).reshape(B, S, D) @ wo

    def _B_ref(x, wqkv, wo):
        B, S, D = x.shape
        H = 32; Dh = D // H
        qkv = (lambda x, *d: x.permute(*d))((x @ wqkv).reshape(B, S, 3, H, Dh), 2, 0, 3, 1, 4)
        q, k, v = qkv[0], qkv[1], qkv[2]
        phi = lambda t: torch.where(t > 0, t + 1, torch.exp(t)) + 1e-6
        pq, pk = phi(q), phi(k)
        kv = torch.einsum("bhsd,bhse->bhde", pk, v)
        z = torch.einsum("bhsd->bhd", pk)
        num = torch.einsum("bhqd,bhde->bhqe", pq, kv)
        den = torch.einsum("bhqd,bhd->bhq", pq, z)[..., None] + 1e-6
        o = num / den
        return (lambda x, *d: x.permute(*d))(o, 0, 2, 1, 3).reshape(B, S, D) @ wo

    a = _A_ref(A_x, A_wqkv, A_w_phi, A_wo)
    b = _B_ref(B_x, B_wqkv, B_wo)
    return torch.concatenate([a, b], axis=-1)
```

```python
import re

TRANS = ("v_exp_f32", "v_log_f32", "v_rcp_f32", "v_rsq_f32", "v_sqrt_f32", "v_sin_f32", "v_cos_f32")

def regs_of(tok):
    tok = tok.strip()
    m = re.fullmatch(r"-?\|?(?:abs\()?([vsa])(\d+)\)?\|?", tok)
    if m:
        return [(m.group(1), int(m.group(2)))]
    m = re.fullmatch(r"-?([vsa])\[(\d+):(\d+)\]", tok)
    if m:
        return [(m.group(1), i) for i in range(int(m.group(2)), int(m.group(3)) + 1)]
    if tok == "vcc":
        return [("s", "vcc_lo"), ("s", "vcc_hi")]
    if tok == "exec":
        return [("s", "exec_lo"), ("s", "exec_hi")]
    if tok == "m0":
        return [("s", "m0")]
    return []

class Ins:
    __slots__ = ("text", "op", "ops", "mods", "kind", "wr", "rd", "label", "comment")
    def __init__(self, text):
        self.text = text
        self.label = None
        t = text.split(";")[0].strip()
        if t.endswith(":"):
            self.kind = "label"; self.op = ""; self.ops = []; self.wr = []; self.rd = []; self.mods = ""
            return
        if not t or t.startswith("."):
            self.kind = "dir"; self.op = ""; self.ops = []; self.wr = []; self.rd = []; self.mods = ""
            return
        parts = t.split(None, 1)
        self.op = parts[0]
        rest = parts[1] if len(parts) > 1 else ""
        ops = []; cur = ""; depth = 0
        for ch in rest:
            if ch == "[": depth += 1
            if ch == "]": depth -= 1
            if ch == "," and depth == 0:
                ops.append(cur.strip()); cur = ""
            else:
                cur += ch
        if cur.strip(): ops.append(cur.strip())
        mods = ""
        if ops:
            last = ops[-1].split(None, 1)
            if len(last) > 1:
                ops[-1] = last[0]; mods = last[1]
        self.ops = ops; self.mods = mods
        op = self.op
        R = lambda i: regs_of(ops[i]) if i < len(ops) else []
        wr = []; rd = []
        if op.startswith("v_mfma"):
            self.kind = "mfma"; wr = R(0); rd = R(1) + R(2) + R(3)
        elif op.startswith("v_"):
            self.kind = "valu"
            if op.startswith("v_cmp"):
                wr = R(0); rd = sum((R(i) for i in range(1, len(ops))), [])
            elif op.startswith("v_permlane") and "swap" in op:
                wr = R(0) + R(1); rd = R(0) + R(1)
            elif op.startswith(("v_add_co", "v_sub_co", "v_addc_co", "v_subb_co")):
                wr = R(0) + R(1); rd = sum((R(i) for i in range(2, len(ops))), [])
            else:
                wr = R(0); rd = sum((R(i) for i in range(1, len(ops))), [])
                if op.startswith(("v_fmac", "v_dot2c", "v_writelane")) or "dpp" in op or "row_" in mods:
                    rd = rd + R(0)
                if op.startswith("v_cndmask") and len(ops) == 3:
                    rd = rd + regs_of("vcc")
        elif op.startswith("ds_"):
            self.kind = "ds"
            if op.startswith(("ds_read", "ds_bpermute", "ds_permute", "ds_swizzle")):
                wr = R(0); rd = sum((R(i) for i in range(1, len(ops))), [])
            else:
                rd = sum((R(i) for i in range(len(ops))), [])
        elif op.startswith(("buffer_", "global_")):
            self.kind = "vmem"
            islds = " lds" in (" " + mods) or "load_lds" in op
            if "load" in op and not islds:
                wr = R(0); rd = sum((R(i) for i in range(1, len(ops))), [])
            elif "atomic" in op and "sc0" in mods:
                wr = R(0); rd = sum((R(i) for i in range(len(ops))), [])
            else:
                rd = sum((R(i) for i in range(len(ops))), [])
            if islds: rd = rd + [("s", "m0")]
        elif op.startswith("s_"):
            self.kind = "salu"
            if op in ("s_nop", "s_waitcnt", "s_barrier", "s_endpgm", "s_sleep", "s_setprio") or op.startswith(("s_cbranch", "s_branch")):
                pass
            elif op.startswith("s_cmp") or op.startswith("s_bitcmp"):
                rd = sum((R(i) for i in range(len(ops))), [])
            else:
                wr = R(0); rd = sum((R(i) for i in range(1, len(ops))), [])
        else:
            raise ValueError("unknown op: " + text)
        self.wr = wr; self.rd = rd

    def states(self):
        if self.kind in ("label", "dir"): return 0
        if self.op == "s_nop": return int(self.ops[0], 0) + 1
        return 1

def mfma_passes(op):
    if "32x32x16" in op or "32x32x8" in op: return 8
    if "16x16x32" in op or "16x16x16" in op: return 4
    raise ValueError(op)

def required(prod, cons):
    need = 0
    pw = set(prod.wr); cr = set(cons.rd); cw = set(cons.wr)
    pv = {r for r in pw if r[0] in "va"}
    ps = {r for r in pw if r[0] == "s"}
    if prod.kind == "valu":
        if cons.kind == "mfma" and pv & cr: need = max(need, 2)
        if prod.op.startswith(TRANS) and cons.kind in ("valu", "mfma") and not cons.op.startswith(TRANS) and pv & cr: need = max(need, 1)
        if prod.op.startswith(TRANS) and cons.kind == "valu" and cons.op.startswith(TRANS) and pv & cr: need = max(need, 1)
        if cons.kind == "valu" and cons.op.startswith(("v_readfirstlane", "v_readlane")) and pv & cr: need = max(need, 1)
        if cons.kind == "valu" and ("dpp" in cons.op or "row_" in cons.mods) and pv & cr: need = max(need, 2)
        if cons.kind == "valu" and cons.op.startswith("v_permlane") and pv & cr: need = max(need, 2)
        if ps:
            if cons.kind == "valu" and ps & cr: need = max(need, 2)
            if cons.kind == "valu" and cons.op.startswith(("v_readlane", "v_writelane")) and ps & cr: need = max(need, 4)
            if cons.kind == "vmem" and ps & cr: need = max(need, 5)
            if cons.kind == "salu" and ps & cr: need = max(need, 1)
            if cons.kind == "mfma" and ps & cr: need = max(need, 2)
    if prod.kind == "mfma":
        n = mfma_passes(prod.op)
        big = {4: 8, 8: 12}[n]; ovl = {4: 6, 8: 10}[n]
        if cons.kind in ("valu",) and (pv & cr or pv & cw): need = max(need, big)
        if cons.kind in ("ds", "vmem") and (pv & cr or pv & cw): need = max(need, big)
        if cons.kind == "mfma":
            ab = set(regs_of(cons.ops[1]) + regs_of(cons.ops[2]))
            c = regs_of(cons.ops[3])
            if pv & ab: need = max(need, big)
            if pv & set(c):
                if not (c == prod.wr and mfma_passes(cons.op) == n): need = max(need, ovl)
            elif pv & cw:
                need = max(need, ovl)
        c = set(regs_of(prod.ops[3]))
        if cons.kind == "valu" and c & cw: need = max(need, {4: 3, 8: 7}[n])
    if prod.kind == "salu":
        if ("s", "m0") in pw and cons.kind == "vmem" and ("s", "m0") in cr: need = max(need, 1)
    if prod.kind == "vmem" and "store" in prod.op and ("x4" in prod.op or "x3" in prod.op):
        data = set(regs_of(prod.ops[0]))
        if data & cw: need = max(need, 2)
    return need

class Asm:
    def __init__(self):
        self.ins = []
    def __call__(self, text):
        for line in text.split("\n"):
            line = line.strip()
            if line and not line.startswith(";"):
                self.ins.append(Ins(line))
            elif line.startswith(";"):
                i = Ins(""); i.text = line; self.ins.append(i)
    def label(self, name):
        self.ins.append(Ins(name + ":"))
    def fix_hazards(self, window=24, verbose=False):
        out = []
        nfix = 0
        for cur in self.ins:
            if cur.kind not in ("label", "dir"):
                dist = 0; need_extra = 0
                for prev in reversed(out):
                    if prev.kind in ("label", "dir"):
                        continue
                    r = required(prev, cur)
                    if r > dist: need_extra = max(need_extra, r - dist)
                    dist += prev.states()
                    if dist >= window: break
                if need_extra > 0:
                    nfix += 1
                    k = need_extra
                    while k > 0:
                        n = min(k, 16)
                        out.append(Ins(f"s_nop {n-1}"))
                        k -= n
                    if verbose: print(f"hazard: +{need_extra} before {cur.text}")
            out.append(cur)
        self.ins = out
        return nfix
    def text(self):
        lines = []
        for i in self.ins:
            if i.kind == "label": lines.append(i.text)
            else: lines.append("    " + i.text)
        return "\n".join(lines) + "\n"
```

```python
import sys, argparse
sys.path.insert(0, "gen")
from asmlib import Asm

KNAME = "concat_heads__linear_kernel_hedgehog__linear_attn_block__prompt_kernel"

WS_G      = 0
WS_FLAG   = 0x1000
WS_R      = 0x10000
WS_P      = 0x40000
WS_O      = 0x300000
WS_DBG    = 0x800000
WS_SIZE   = 0x10000000

SLOT = 32768
L_PHI = 3 * SLOT
L_V   = 4 * SLOT
L_KVA = 4 * SLOT
LDS_BYTES = 163840

sX, sW_, sWO, sWS, sOUT, sPHI, sO = 24, 28, 32, 36, 40, 44, 48
sBR, sRT, sHG, sC0, sWV, sRG, sHP, sTAG, sG = 52, 53, 54, 55, 56, 57, 58, 59, 60
sLOG2E, sEPS = 61, 62
sT = list(range(64, 96))
def srd(b): return f"s[{b}:{b+3}]"

vLANE, vXa, vXb, vW, vWq, vWo, vWr = 1, 2, 3, 4, 5, 6, 7
vXr = [8, 9, 10, 11]
WF = 32
ACCK, ACCV, ACCQ = 64, 80, 96
WPH = 112
XB = 128
def vr(b, n=4): return f"v[{b}:{b+n-1}]"
def X(t, ks): return vr(XB + 16*t + 4*ks)

class Gen:
    def __init__(self, rot=True, debug=False, stamps=False, spin=20000):
        self.a = Asm()
        self.rot = rot; self.debug = debug; self.stamps = stamps; self.spin = spin
        self.nstamp = 0
        self.lbl = 0
    def L(self, base):
        self.lbl += 1
        return f"L_{base}_{self.lbl}"
    def stamp(self):
        if not self.stamps: return
        n = self.nstamp; self.nstamp += 1
        assert n < 24
        self.a(f"""
        s_memtime s[96:97]
        s_waitcnt lgkmcnt(0)
        v_writelane_b32 v31, s96, {n}
        """)
    def dump(self, slot, base, n):
        if not self.debug: return
        a = self.a
        assert n <= 32
        a(f"""
        s_lshl_b32 s98, s2, 3
        s_add_u32 s98, s98, s{sWV}
        s_add_u32 s98, s98, {slot*2048}
        s_lshl_b32 s98, s98, 13
        s_add_u32 s98, s98, {WS_DBG}
        v_lshlrev_b32 v30, 2, v{vLANE}
        s_nop 12
        """)
        for i in range(n):
            a(f"buffer_store_dword v{base+i}, v30, {srd(sWS)}, s98 offen offset:{256*i if i < 16 else 0}" if i < 16 else
              f"buffer_store_dword v{base+i}, v29, {srd(sWS)}, s98 offen offset:{256*(i-16)}")
            if i == 15 and n > 16:
                a(f"v_add_u32 v29, 4096, v30")
        a("s_waitcnt vmcnt(0)")

    def prologue(self):
        a = self.a
        t = sT
        a(f"""
        s_cmp_ge_u32 s2, 0x100
        s_cbranch_scc1 L_END
        s_load_dwordx16 s[4:19], s[0:1], 0
        s_load_dwordx2 s[20:21], s[0:1], 72
        s_and_b32 s{t[0]}, s2, 7
        s_lshr_b32 s{t[1]}, s2, 3
        s_lshr_b32 s{sBR}, s{t[0]}, 2
        s_and_b32 s{t[2]}, s{t[0]}, 1
        s_bfe_u32 s{t[3]}, s{t[0]}, 0x10001
        s_lshr_b32 s{t[4]}, s{t[1]}, 2
        s_and_b32 s{t[5]}, s{t[1]}, 3
        s_lshl_b32 s{t[6]}, s{t[5]}, 1
        s_add_u32 s{sC0}, s{t[4]}, s{t[6]}
        s_and_b32 s{sC0}, s{sC0}, {7 if self.rot else 0}
        s_lshl_b32 s{t[2]}, s{t[2]}, 3
        s_add_u32 s{sRT}, s{t[2]}, s{t[4]}
        s_lshl_b32 s{t[3]}, s{t[3]}, 2
        s_add_u32 s{sHG}, s{t[3]}, s{t[5]}
        v_and_b32 v{vLANE}, 63, v0
        v_lshrrev_b32 v14, 6, v0
        v_lshrrev_b32 v15, 3, v{vLANE}
        v_readfirstlane_b32 s{sWV}, v14
        v_and_b32 v16, 7, v{vLANE}
        v_lshrrev_b32 v17, 4, v{vLANE}
        s_and_b32 s{sRG}, s{sWV}, 3
        s_lshr_b32 s{sHP}, s{sWV}, 2
        s_mov_b32 s{sLOG2E}, 0x3fb8aa3b
        s_mov_b32 s{sEPS}, 0x358637bd
        s_lshl_b32 s{t[0]}, s{sRT}, 7
        s_lshl_b32 s{t[1]}, s{sWV}, 4
        s_add_u32 s{t[0]}, s{t[0]}, s{t[1]}
        v_add_u32 v18, s{t[0]}, v15
        v_lshlrev_b32 v18, 10, v18
        v_xor_b32 v19, v16, v17
        v_lshl_add_u32 v{vXa}, v19, 4, v18
        v_xor_b32 v{vXb}, 64, v{vXa}
        v_add_u32 v{vXb}, 7168, v{vXb}
        v_and_b32 v19, 1, v17
        v_lshlrev_b32 v19, 2, v19
        v_xor_b32 v19, v16, v19
        v_lshlrev_b32 v19, 4, v19
        s_lshl_b32 s{t[0]}, s{sWV}, 3
        v_add_u32 v20, s{t[0]}, v15
        s_lshl_b32 s{t[1]}, s{sHG}, 7
        v_add_u32 v19, s{t[1]}, v19
        v_mul_u32_u24 v21, 3072, v20
        v_add_u32 v{vWq}, v21, v19
        v_add_u32 v{vW}, 1024, v{vWq}
        v_lshl_add_u32 v{vWo}, v20, 10, v19
        v_lshrrev_b32 v18, 5, v{vLANE}          ; half
        v_bfe_u32 v19, v{vLANE}, 2, 2           ; r
        v_and_b32 v20, 3, v{vLANE}              ; c
        v_and_b32 v21, 1, v17                   ; g1
        v_lshrrev_b32 v22, 1, v19               ; r>>1
        v_xor_b32 v22, s{sHP}, v22              ; hp ^ (r>>1)
        v_lshlrev_b32 v22, 2, v22
        v_lshl_add_u32 v22, v21, 1, v22
        v_lshrrev_b32 v23, 1, v20
        v_add_u32 v22, v22, v23                 ; unit
        v_lshlrev_b32 v22, 4, v22
        v_and_b32 v23, 1, v20
        v_lshl_add_u32 v22, v23, 3, v22
        v_lshl_add_u32 v22, v19, 7, v22
        v_lshl_add_u32 v{vWr}, v18, 12, v22
        ; ---- vXr
        v_and_b32 v22, 31, v{vLANE}             ; l31
        v_lshrrev_b32 v23, 4, v22               ; l31>>4
        s_lshl_b32 s{t[0]}, s{sRG}, 1
        v_add_u32 v23, s{t[0]}, v23             ; p>>1
        v_lshlrev_b32 v23, 12, v23
        v_bfe_u32 v24, v22, 3, 1
        v_lshl_add_u32 v23, v24, 10, v23
        v_and_b32 v24, 7, v22
        v_lshl_add_u32 v23, v24, 7, v23
        v_add_u32 v23, 2048, v23
        v_bfe_u32 v24, v22, 1, 3                ; f
        v_xor_b32 v24, v18, v24
        v_lshl_add_u32 v{vXr[0]}, v24, 4, v23
        v_xor_b32 v{vXr[1]}, 32, v{vXr[0]}
        v_xor_b32 v{vXr[2]}, 64, v{vXr[0]}
        v_xor_b32 v{vXr[3]}, 96, v{vXr[0]}
        v_bfe_u32 v24, v0, 1, 2
        v_xor_b32 v24, 2, v24
        v_lshlrev_b32 v24, 4, v24
        v_lshl_add_u32 v24, v0, 6, v24
        v_add_u32 v24, {L_V}, v24
        v_xor_b32 v25, 16, v24
        v_mov_b32 v26, 0x3f803f80
        v_mov_b32 v27, 0x3f803f80
        v_mov_b32 v28, 0x3f803f80
        v_mov_b32 v29, 0x3f803f80
        s_waitcnt lgkmcnt(0)
        ; ---- SRDs
        s_cmp_eq_u32 s{sBR}, 0
        s_cselect_b32 s{sX}, s4, s12
        s_cselect_b32 s{sX+1}, s5, s13
        s_cselect_b32 s{sW_}, s6, s14
        s_cselect_b32 s{sW_+1}, s7, s15
        s_cselect_b32 s{sWO}, s10, s16
        s_cselect_b32 s{sWO+1}, s11, s17
        s_mov_b32 s{sX+2}, 0x200000
        s_mov_b32 s{sX+3}, 0x20000
        s_mov_b32 s{sW_+2}, 0x180000
        s_mov_b32 s{sW_+3}, 0x20000
        s_mov_b32 s{sWO+2}, 0x80000
        s_mov_b32 s{sWO+3}, 0x20000
        s_mov_b32 s{sWS}, s20
        s_mov_b32 s{sWS+1}, s21
        s_mov_b32 s{sWS+2}, {WS_SIZE}
        s_mov_b32 s{sWS+3}, 0x20000
        s_mov_b32 s{sOUT}, s18
        s_mov_b32 s{sOUT+1}, s19
        s_mov_b32 s{sOUT+2}, 0x400000
        s_mov_b32 s{sOUT+3}, 0x20000
        s_mov_b32 s{sPHI}, s8
        s_mov_b32 s{sPHI+1}, s9
        s_mov_b32 s{sPHI+2}, 0x4000
        s_mov_b32 s{sPHI+3}, 0x20000
        s_lshl_b32 s{t[0]}, s{sBR}, 21
        s_add_u32 s{t[0]}, s{t[0]}, {WS_O}
        s_add_u32 s{sO}, s20, s{t[0]}
        s_addc_u32 s{sO+1}, s21, 0
        s_mov_b32 s{sO+2}, 0x200000
        s_mov_b32 s{sO+3}, 0x20000
        s_lshl_b32 s{t[0]}, s{sBR}, 8
        s_load_dword s{sG}, s[20:21], s{t[0]}
        """)
        l1 = self.L("nophi")
        a(f"""
        s_cmp_lg_u32 s{sBR}, 0
        s_cbranch_scc1 {l1}
        s_cmp_ge_u32 s{sWV}, 2
        s_cbranch_scc1 {l1}
        s_lshl_b32 s{t[0]}, s{sWV}, 10
        s_add_u32 m0, s{t[0]}, {L_PHI}
        s_lshl_b32 s{t[1]}, s{sHG}, 11
        s_add_u32 s{t[1]}, s{t[1]}, s{t[0]}
        v_lshlrev_b32 v14, 4, v{vLANE}
        buffer_load_dwordx4 v14, {srd(sPHI)}, s{t[1]} offen lds
        """)
        a.label(l1)
        for t_ in range(3):
            self.dma_round(t_)
        a(f"""
        ds_write_b128 v24, v[26:29]
        ds_write_b128 v25, v[26:29]
        """)

    def chunk_sgpr(self, add, dst):
        self.a(f"""
        s_add_u32 s{dst}, s{sC0}, {add}
        s_and_b32 s{dst}, s{dst}, 7
        """)

    def dma_round(self, t):
        a = self.a; s = sT
        slot = (t & 3) * SLOT
        self.chunk_sgpr(t, s[8])
        a(f"""
        s_lshl_b32 s{s[9]}, s{sWV}, 12
        s_add_u32 m0, s{s[9]}, {slot}
        s_mul_i32 s{s[10]}, s{s[8]}, {64*3072}
        s_lshl_b32 s{s[11]}, s{s[8]}, 7
        buffer_load_dwordx4 v{vW}, {srd(sW_)}, s{s[10]} offen lds
        buffer_load_dwordx4 v{vW}, {srd(sW_)}, s{s[10]} offen offset:1024 lds
        s_add_u32 m0, s{s[9]}, {slot + 2048}
        s_nop 0
        buffer_load_dwordx4 v{vXa}, {srd(sX)}, s{s[11]} offen lds
        buffer_load_dwordx4 v{vXb}, {srd(sX)}, s{s[11]} offen offset:1024 lds
        """)

    def dma_wq(self, b):
        a = self.a; s = sT
        a(f"s_lshl_b32 s{s[9]}, s{sWV}, 12")
        for j in range(4):
            self.chunk_sgpr(4*b + j, s[8])
            a(f"""
            s_add_u32 m0, s{s[9]}, {b*SLOT + j*1024}
            s_mul_i32 s{s[10]}, s{s[8]}, {64*3072}
            buffer_load_dwordx4 v{vWq}, {srd(sW_)}, s{s[10]} offen lds
            """)

    def dma_wo(self, b, slot):
        a = self.a; s = sT
        a(f"s_lshl_b32 s{s[9]}, s{sWV}, 12")
        for j in range(4):
            a(f"""
            s_add_u32 s{s[8]}, s{sHG}, {4*b + j}
            s_and_b32 s{s[8]}, s{s[8]}, 7
            s_add_u32 m0, s{s[9]}, {slot*SLOT + j*1024}
            s_lshl_b32 s{s[10]}, s{s[8]}, 16
            buffer_load_dwordx4 v{vWo}, {srd(sWO)}, s{s[10]} offen lds
            """)

    def toggle_slotpair(self):
        a = self.a
        for r in [vWr] + vXr:
            a(f"v_xor_b32 v{r}, 0x10000, v{r}")

    def wphi_read(self):
        a = self.a
        a(f"""
        v_lshrrev_b32 v14, 5, v{vLANE}          ; half_k
        v_bfe_u32 v15, v{vLANE}, 2, 2           ; r
        v_lshl_add_u32 v14, v14, 2, v15         ; d = 4*half + r
        v_lshlrev_b32 v14, 5, v14               ; *32
        s_lshl_b32 s{sT[0]}, s{sHP}, 10
        s_add_u32 s{sT[0]}, s{sT[0]}, {L_PHI}
        v_add_u32 v14, s{sT[0]}, v14
        v_bfe_u32 v15, v{vLANE}, 4, 1           ; g1
        v_bfe_u32 v16, v{vLANE}, 1, 1           ; c'>>1
        v_lshl_add_u32 v17, v15, 1, v16         ; sigma_k = 2*g1 + (c'>>1)
        v_lshl_add_u32 v18, v16, 1, v15         ; sigma_q = 2*(c'>>1) + g1
        v_lshl_add_u32 v17, v17, 3, v14
        v_lshl_add_u32 v18, v18, 3, v14
        ds_read_b64_tr_b16 v[{WPH+0}:{WPH+1}], v17
        ds_read_b64_tr_b16 v[{WPH+2}:{WPH+3}], v17 offset:256
        ds_read_b64_tr_b16 v[{WPH+4}:{WPH+5}], v17 offset:512
        ds_read_b64_tr_b16 v[{WPH+6}:{WPH+7}], v17 offset:768
        ds_read_b64_tr_b16 v[{WPH+8}:{WPH+9}], v18
        ds_read_b64_tr_b16 v[{WPH+10}:{WPH+11}], v18 offset:256
        ds_read_b64_tr_b16 v[{WPH+12}:{WPH+13}], v18 offset:512
        ds_read_b64_tr_b16 v[{WPH+14}:{WPH+15}], v18 offset:768
        v_bfe_u32 v14, v{vLANE}, 2, 1
        v_mov_b32 v15, 0x80008000
        v_mul_lo_u32 v14, v14, v15
        s_waitcnt lgkmcnt(0)
        """)
        for i in range(16):
            a(f"v_xor_b32 v{WPH+i}, v14, v{WPH+i}")

    def kv_round(self, t):
        a = self.a
        slot_imm = (t & 1) * SLOT
        a("s_waitcnt vmcnt(8) lgkmcnt(0)" if t == 0 else "s_waitcnt vmcnt(8)")
        a("s_barrier")
        if t == 0:
            l = self.L("nowphi")
            a(f"s_cmp_lg_u32 s{sBR}, 0")
            a(f"s_cbranch_scc1 {l}")
            self.wphi_read()
            a.label(l)
            a("s_barrier")
        if t + 3 <= 7: self.dma_round(t + 3)
        elif t == 5: self.dma_wq(0)
        elif t == 6: self.dma_wq(1)
        elif t == 7: self.dma_wo(0, 2)
        def reads(ks):
            a(f"ds_read_b128 {X(t,ks)}, v{vXr[ks]} offset:{slot_imm}")
            for part in range(2):
                for rd in range(2):
                    d = WF + ks*8 + part*4 + rd*2
                    a(f"ds_read_b64_tr_b16 v[{d}:{d+1}], v{vWr} offset:{slot_imm + ks*8192 + part*1024 + rd*512}")
        def mf(ks):
            ck = "0" if (t == 0 and ks == 0) else vr(ACCK, 16)
            cv = "0" if (t == 0 and ks == 0) else vr(ACCV, 16)
            a(f"v_mfma_f32_32x32x16_bf16 {vr(ACCK,16)}, {vr(WF+ks*8)}, {X(t,ks)}, {ck}")
            a(f"v_mfma_f32_32x32x16_bf16 {vr(ACCV,16)}, {vr(WF+ks*8+4)}, {X(t,ks)}, {cv}")
        reads(0); reads(1); reads(2)
        a("s_waitcnt lgkmcnt(10)"); mf(0)
        reads(3)
        a("s_waitcnt lgkmcnt(10)"); mf(1)
        a("s_waitcnt lgkmcnt(5)"); mf(2)
        a("s_waitcnt lgkmcnt(0)"); mf(3)
        if t % 2 == 1: self.toggle_slotpair()

    def softmax(self, D, out):
        a = self.a
        d = lambda i: f"v{D+i}"
        a(f"""
        v_max3_f32 v14, {d(0)}, {d(1)}, {d(2)}
        v_max3_f32 v15, {d(3)}, {d(4)}, {d(5)}
        v_max3_f32 v16, {d(6)}, {d(7)}, {d(8)}
        v_max3_f32 v17, {d(9)}, {d(10)}, {d(11)}
        v_max3_f32 v18, {d(12)}, {d(13)}, {d(14)}
        v_max3_f32 v14, v14, v15, {d(15)}
        v_max3_f32 v16, v16, v17, v18
        v_max_f32 v14, v14, v16
        v_mul_f32 v14, s{sLOG2E}, v14
        """)
        for i in range(16):
            a(f"v_fma_f32 {d(i)}, {d(i)}, s{sLOG2E}, -v14")
        for i in range(16):
            a(f"v_exp_f32 {d(i)}, {d(i)}")
        a(f"""
        v_add_f32 v15, {d(0)}, {d(1)}
        v_add_f32 v16, {d(2)}, {d(3)}
        v_add_f32 v17, {d(4)}, {d(5)}
        v_add_f32 v18, {d(6)}, {d(7)}
        v_add_f32 v19, {d(8)}, {d(9)}
        v_add_f32 v20, {d(10)}, {d(11)}
        v_add_f32 v21, {d(12)}, {d(13)}
        v_add_f32 v14, {d(14)}, {d(15)}
        v_add_f32 v15, v15, v16
        v_add_f32 v17, v17, v18
        v_add_f32 v19, v19, v20
        v_add_f32 v21, v21, v14
        v_add_f32 v15, v15, v17
        v_add_f32 v19, v19, v21
        v_add_f32 v15, v15, v19
        v_rcp_f32 v15, v15
        """)
        for i in range(16):
            a(f"v_mul_f32 {d(i)}, v15, {d(i)}")
        for q in range(8):
            a(f"v_cvt_pk_bf16_f32 v{out+q}, {d(2*q)}, {d(2*q+1)}")

    def elu(self, D, out):
        a = self.a
        for i in range(16):
            a(f"v_mul_f32 v{14+i}, s{sLOG2E}, v{D+i}")
        for i in range(16):
            a(f"v_exp_f32 v{14+i}, v{14+i}")
        for i in range(16):
            a(f"v_add_f32 v{D+i}, 1.0, v{D+i}")
        for i in range(16):
            a(f"v_med3_f32 v{D+i}, v{14+i}, 1.0, v{D+i}")
        for i in range(16):
            a(f"v_add_f32 v{D+i}, s{sEPS}, v{D+i}")
        for q in range(8):
            a(f"v_cvt_pk_bf16_f32 v{out+q}, v{D+2*q}, v{D+2*q+1}")

    def k_epilogue(self):
        a = self.a; s = sT
        a("s_barrier")
        a(f"""
        v_and_b32 v22, 31, v{vLANE}
        s_lshl_b32 s{s[0]}, s{sRG}, 5
        v_add_u32 v23, s{s[0]}, v22            ; row
        v_lshlrev_b32 v23, 6, v23              ; row*64
        v_bfe_u32 v24, v22, 1, 2               ; swz
        v_lshrrev_b32 v25, 5, v{vLANE}         ; half
        v_xor_b32 v26, v25, v24
        v_lshl_add_u32 v26, v26, 4, v23
        s_lshl_b32 s{s[1]}, s{sHP}, 14
        s_add_u32 s{s[2]}, s{s[1]}, {L_V}
        v_add_u32 v27, s{s[2]}, v26
        """)
        for q in range(8):
            a(f"v_cvt_pk_bf16_f32 v{40+q}, v{ACCV+2*q}, v{ACCV+2*q+1}")
        a(f"ds_write_b128 v27, v[40:43]")
        a(f"ds_write_b128 v27, v[44:47] offset:8192")
        lB = self.L("kepiB"); lE = self.L("kepiE")
        a(f"s_cmp_lg_u32 s{sBR}, 0")
        a(f"s_cbranch_scc1 {lB}")
        for q in range(8):
            a(f"v_cvt_pk_bf16_f32 v{32+q}, v{ACCK+2*q}, v{ACCK+2*q+1}")
        a(f"v_mfma_f32_32x32x16_bf16 v[48:63], {vr(WPH)}, v[32:35], 0")
        a(f"v_mfma_f32_32x32x16_bf16 v[64:79], {vr(WPH+4)}, v[36:39], 0")
        a(f"""
        v_lshlrev_b32 v28, 1, v25
        v_xor_b32 v28, v28, v24
        v_lshl_add_u32 v28, v28, 4, v23
        s_add_u32 s{s[2]}, s{s[1]}, {L_PHI}
        v_add_u32 v28, s{s[2]}, v28
        v_xor_b32 v29, 16, v28
        """)
        self.softmax(48, 32)
        a("ds_write_b128 v28, v[32:35]")
        a("ds_write_b128 v29, v[36:39]")
        self.softmax(64, 40)
        a("ds_write_b128 v28, v[40:43] offset:8192")
        a("ds_write_b128 v29, v[44:47] offset:8192")
        a(f"s_branch {lE}")
        a.label(lB)
        a(f"""
        s_lshl_b32 s{s[2]}, s{sHP}, 13
        s_add_u32 s{s[2]}, s{s[2]}, {L_PHI}
        v_add_u32 v30, s{s[2]}, v26
        v_xor_b32 v31, 32, v30
        """ if not self.stamps else f"""
        s_lshl_b32 s{s[2]}, s{sHP}, 13
        s_add_u32 s{s[2]}, s{s[2]}, {L_PHI}
        v_add_u32 v30, s{s[2]}, v26
        v_xor_b32 v13, 32, v30
        """)
        self.elu(ACCK, 32)
        a("ds_write_b128 v30, v[32:35]")
        a(f"ds_write_b128 v{31 if not self.stamps else 13}, v[36:39]")
        a.label(lE)
        a("s_waitcnt vmcnt(4) lgkmcnt(0)")
        a("s_barrier")

    def kv_mfma_publish(self):
        a = self.a; s = sT
        lskip = self.L("nokv")
        a(f"s_cmp_ge_u32 s{sWV}, 4")
        a(f"s_cbranch_scc1 {lskip}")
        a(f"""
        v_lshrrev_b32 v14, 5, v{vLANE}          ; half
        v_bfe_u32 v15, v{vLANE}, 2, 2           ; r
        v_and_b32 v16, 3, v{vLANE}              ; c
        v_bfe_u32 v17, v{vLANE}, 4, 1           ; g1
        v_lshrrev_b32 v18, 1, v16
        v_lshl_add_u32 v18, v17, 1, v18         ; u = 2g1 + (c>>1)
        v_lshrrev_b32 v19, 1, v15               ; r>>1
        v_xor_b32 v20, v18, v19                 ; rd=0 : u ^ (r>>1)
        v_xor_b32 v21, 2, v20                   ; rd=1 : u ^ (2 + (r>>1))
        v_lshl_add_u32 v22, v14, 3, v15         ; 8half + r
        v_lshlrev_b32 v22, 6, v22
        v_and_b32 v23, 1, v16
        v_lshl_add_u32 v22, v23, 3, v22
        v_lshl_add_u32 v20, v20, 4, v22
        v_lshl_add_u32 v21, v21, 4, v22
        v_add_u32 v21, 256, v21                 ; +4 rows
        s_lshr_b32 s{s[0]}, s{sWV}, s{sBR}
        s_lshl_b32 s{s[0]}, s{s[0]}, 13
        s_add_u32 s{s[0]}, s{s[0]}, {L_PHI}
        s_lshl_b32 s{s[1]}, s{sWV}, 13
        s_add_u32 s{s[1]}, s{s[1]}, {L_V}
        v_add_u32 v22, s{s[0]}, v20
        v_add_u32 v23, s{s[0]}, v21
        v_add_u32 v24, s{s[1]}, v20
        v_add_u32 v25, s{s[1]}, v21
        """)
        def rd(j):
            b = 32 + (j & 1)*8
            a(f"ds_read_b64_tr_b16 v[{b}:{b+1}], v22 offset:{j*1024}")
            a(f"ds_read_b64_tr_b16 v[{b+2}:{b+3}], v23 offset:{j*1024}")
            a(f"ds_read_b64_tr_b16 v[{b+4}:{b+5}], v24 offset:{j*1024}")
            a(f"ds_read_b64_tr_b16 v[{b+6}:{b+7}], v25 offset:{j*1024}")
        rd(0)
        for j in range(8):
            if j + 1 < 8:
                rd(j+1); a("s_waitcnt lgkmcnt(4)")
            else:
                a("s_waitcnt lgkmcnt(0)")
            b = 32 + (j & 1)*8
            c = "0" if j == 0 else "v[48:63]"
            a(f"v_mfma_f32_32x32x16_bf16 v[48:63], v[{b}:{b+3}], v[{b+4}:{b+7}], {c}")
        a(f"""
        s_waitcnt lgkmcnt(0)
        s_add_u32 s{sTAG}, s{sG}, 1
        s_mul_i32 s{sTAG}, s{sTAG}, 0x9E3779B1
        """)
        a(f"""
        v_and_b32 v16, 15, v{vLANE}
        v_lshl_add_u32 v16, v14, 4, v16         ; rho
        v_lshlrev_b32 v16, 4, v16
        s_lshl_b32 s{s[0]}, s{sRT}, 9
        v_add_u32 v16, s{s[0]}, v16
        s_lshl_b32 s{s[0]}, s{sBR}, 3
        s_add_u32 s{s[0]}, s{s[0]}, s{sHG}
        s_lshl_b32 s{s[0]}, s{s[0]}, 2
        s_add_u32 s{s[0]}, s{s[0]}, s{sWV}
        s_lshl_b32 s{s[0]}, s{s[0]}, 15         ; *4*8192
        s_add_u32 s{s[0]}, s{s[0]}, {WS_P}
        v_and_b32 v17, 1, v{vLANE}
        v_cmp_eq_u32 vcc, 1, v17
        """)
        lB = self.L("pubB"); lS = self.L("pubS")
        a(f"s_cmp_lg_u32 s{sBR}, 0")
        a(f"s_cbranch_scc1 {lB}")
        for q in range(8):
            a(f"v_cvt_pk_bf16_f32 v{64 + 4*(q>>1) + (q&1)}, v{48+2*q}, v{48+2*q+1}")
        for q in range(8):
            a(f"v_mov_b32 v{80+q}, 0")
        for q in range(8):
            a(f"v_permlane16_swap_b32 v{64 + 4*(q>>1) + (q&1)}, v{80+q}")
        for qd in range(4):
            a(f"v_mov_b32 v{64+4*qd+2}, s{sTAG}")
            a(f"v_cndmask_b32 v{64+4*qd+3}, v{80+2*qd}, v{80+2*qd+1}, vcc")
        a(f"s_branch {lS}")
        a.label(lB)
        lodd = self.L("pubBodd"); lBd = self.L("pubBd")
        a(f"s_bitcmp1_b32 s{sWV}, 0")
        a(f"s_cbranch_scc1 {lodd}")
        for q in range(4):
            a(f"v_cvt_pk_bf16_f32 v{64+4*q}, v{48+2*q}, v{48+2*q+1}")
        a(f"s_branch {lBd}")
        a.label(lodd)
        for q in range(4):
            a(f"v_cvt_pk_bf16_f32 v{64+4*q}, v{56+2*q}, v{56+2*q+1}")
        a.label(lBd)
        for q in range(4):
            a(f"v_mov_b32 v{64+4*q+3}, 0")
            a(f"v_mov_b32 v{64+4*q+1}, 0")
            a(f"v_mov_b32 v{64+4*q+2}, s{sTAG}")
        for q in range(4):
            a(f"v_permlane16_swap_b32 v{64+4*q}, v{64+4*q+3}")
        a.label(lS)
        a(f"""
        s_mov_b32 exec_lo, 0xffff
        s_mov_b32 exec_hi, 0xffff
        """)
        for qd in range(4):
            a(f"s_add_u32 s{s[1]}, s{s[0]}, {qd*8192}")
            a(f"buffer_store_dwordx4 v[{64+4*qd}:{64+4*qd+3}], v16, {srd(sWS)}, s{s[1]} offen sc1")
        a("s_mov_b64 exec, -1")
        a.label(lskip)
        a(f"""
        s_waitcnt lgkmcnt(0)
        s_add_u32 s{sTAG}, s{sG}, 1
        s_mul_i32 s{sTAG}, s{sTAG}, 0x9E3779B1
        """)

    def q_pass(self):
        a = self.a
        def rd(t, lo, hi):
            b = WF + (t & 1)*16
            for i in range(lo, hi):
                ks, r_ = i >> 1, i & 1
                d = b + ks*4 + r_*2
                a(f"ds_read_b64_tr_b16 v[{d}:{d+1}], v{vWr} offset:{(t>>2)*SLOT + ks*8192 + (t&3)*1024 + r_*512}")
        rd(0, 0, 8)
        for t in range(8):
            if t + 1 < 8:
                rd(t+1, 0, 7); a("s_waitcnt lgkmcnt(7)"); rd(t+1, 7, 8)
            else:
                a("s_waitcnt lgkmcnt(0)")
            b = WF + (t & 1)*16
            for ks in range(4):
                c = "0" if (t == 0 and ks == 0) else vr(ACCQ, 16)
                a(f"v_mfma_f32_32x32x16_bf16 {vr(ACCQ,16)}, {vr(b+ks*4)}, {X(t,ks)}, {c}")

    def poll(self, name, load, check_reg, after_fail=""):
        a = self.a; s = sT
        lp = self.L(name + "_poll"); ld = self.L(name + "_done")
        a(f"s_mov_b32 s{s[20]}, 0")
        a.label(lp)
        a(load)
        a(f"""
        s_waitcnt vmcnt(0)
        v_cmp_ne_u32 vcc, s{sTAG}, v{check_reg}
        s_cbranch_vccz {ld}
        s_add_u32 s{s[20]}, s{s[20]}, 1
        s_cmp_lt_u32 s{s[20]}, {self.spin}
        s_cbranch_scc0 {ld}
        s_sleep 1
        s_branch {lp}
        """)
        a.label(ld)

    def hop1a(self):
        a = self.a; s = sT
        a(f"""
        v_and_b32 v14, 15, v{vLANE}
        v_lshlrev_b32 v14, 9, v14
        v_lshrrev_b32 v15, 4, v{vLANE}
        s_lshl_b32 s{s[0]}, s{sWV}, 2
        v_add_u32 v15, s{s[0]}, v15             ; rho
        v_lshl_add_u32 v14, v15, 4, v14
        s_lshl_b32 s{s[0]}, s{sBR}, 3
        s_add_u32 s{s[0]}, s{s[0]}, s{sHG}
        s_lshl_b32 s{s[0]}, s{s[0]}, 4
        s_add_u32 s{s[0]}, s{s[0]}, s{sRT}
        s_lshl_b32 s{s[1]}, s{s[0]}, 13
        s_add_u32 s{s[1]}, s{s[1]}, {WS_P}
        """)
        self.poll("h1a", f"buffer_load_dwordx4 v[32:35], v14, {srd(sWS)}, s{s[1]} offen sc1", 34)
        a(f"""
        v_lshlrev_b32 v36, 16, v32
        v_and_b32 v37, 0xffff0000, v32
        v_lshlrev_b32 v38, 16, v33
        v_and_b32 v39, 0xffff0000, v33
        v_lshlrev_b32 v40, 16, v35
        v_and_b32 v41, 0xffff0000, v35
        """)
        for ror in (8, 4, 2, 1):
            for i in range(6):
                a(f"v_add_f32_dpp v{36+i}, v{36+i}, v{36+i} row_ror:{ror} row_mask:0xf bank_mask:0xf")
        a(f"""
        v_cvt_pk_bf16_f32 v44, v36, v37
        v_cvt_pk_bf16_f32 v45, v38, v39
        v_mov_b32 v46, s{sTAG}
        v_cvt_pk_bf16_f32 v47, v40, v41
        v_lshlrev_b32 v15, 4, v15               ; rho*16
        s_lshl_b32 s{s[1]}, s{s[0]}, 9          ; *32*16
        s_add_u32 s{s[1]}, s{s[1]}, {WS_R}
        s_mov_b32 exec_lo, 0x00010001
        s_mov_b32 exec_hi, 0x00010001
        buffer_store_dwordx4 v[44:47], v15, {srd(sWS)}, s{s[1]} offen sc1
        s_mov_b64 exec, -1
        """)

    def q_epilogue(self):
        a = self.a
        lB = self.L("qepiB"); lE = self.L("qepiE")
        a(f"s_cmp_lg_u32 s{sBR}, 0")
        a(f"s_cbranch_scc1 {lB}")
        for q in range(8):
            a(f"v_cvt_pk_bf16_f32 v{32+q}, v{ACCQ+2*q}, v{ACCQ+2*q+1}")
        a(f"v_mfma_f32_32x32x16_bf16 v[48:63], {vr(WPH+8)}, v[32:35], 0")
        a(f"v_mfma_f32_32x32x16_bf16 v[64:79], {vr(WPH+12)}, v[36:39], 0")
        self.softmax(48, ACCQ)
        self.softmax(64, ACCQ+8)
        a(f"s_branch {lE}")
        a.label(lB)
        self.elu(ACCQ, 32)
        for q in range(8):
            a(f"v_mov_b32 v{ACCQ+q}, v{32+q}")
        a.label(lE)

    def wo_regs(self):
        a = self.a
        cnt = 0
        for t in range(8):
            for ks in range(4):
                for r_ in range(2):
                    d = XB + 16*t + 4*ks + 2*r_
                    a(f"ds_read_b64_tr_b16 v[{d}:{d+1}], v{vWr} offset:{(t>>2)*SLOT + ks*8192 + (t&3)*1024 + r_*512}")
                    cnt += 1
                    if cnt % 8 == 0: a("s_waitcnt lgkmcnt(7)")
        a("s_waitcnt lgkmcnt(0)")

    def hop1b(self):
        a = self.a; s = sT
        a(f"""
        v_lshlrev_b32 v14, 4, v0
        s_lshl_b32 s{s[0]}, s{sBR}, 3
        s_add_u32 s{s[0]}, s{s[0]}, s{sHG}
        s_lshl_b32 s{s[0]}, s{s[0]}, 13
        s_add_u32 s{s[0]}, s{s[0]}, {WS_R}
        """)
        self.poll("h1b", f"buffer_load_dwordx4 v[32:35], v14, {srd(sWS)}, s{s[0]} offen sc1", 34)
        lB = self.L("h1bB"); lE = self.L("h1bE")
        a(f"""
        v_lshrrev_b32 v15, 7, v0                ; h
        v_bfe_u32 v16, v0, 5, 2                 ; qd
        v_bfe_u32 v17, v0, 4, 1                 ; half
        v_and_b32 v18, 15, v0                   ; n
        s_cmp_lg_u32 s{sBR}, 0
        s_cbranch_scc1 {lB}
        v_lshlrev_b32 v19, 2, v15
        v_lshl_add_u32 v19, v17, 1, v19
        v_lshrrev_b32 v20, 1, v16
        v_add_u32 v19, v19, v20
        v_lshlrev_b32 v19, 9, v19
        v_and_b32 v20, 1, v16
        v_lshl_add_u32 v19, v20, 3, v19
        v_add_u32 v19, {L_KVA}, v19
        v_lshl_add_u32 v21, v18, 4, v19
        ds_write_b64 v21, v[32:33]
        v_lshl_add_u32 v21, v18, 2, v19         ; z: base + 256 + n*4 (n<2)
        v_cmp_gt_u32 vcc, 2, v18
        s_and_saveexec_b64 s[{s[2]}:{s[3]}], vcc
        ds_write_b32 v21, v35 offset:256
        s_mov_b64 exec, s[{s[2]}:{s[3]}]
        s_branch {lE}
        """)
        a.label(lB)
        a(f"""
        v_lshlrev_b32 v19, 1, v15
        v_lshrrev_b32 v20, 1, v16
        v_add_u32 v19, v19, v20
        v_lshlrev_b32 v19, 9, v19
        v_and_b32 v20, 1, v16
        v_lshl_add_u32 v20, v17, 1, v20
        v_lshl_add_u32 v19, v20, 2, v19
        v_add_u32 v19, {L_KVA}, v19
        v_lshl_add_u32 v21, v18, 4, v19
        ds_write_b32 v21, v32
        v_cmp_eq_u32 vcc, 0, v18
        s_and_saveexec_b64 s[{s[2]}:{s[3]}], vcc
        ds_write_b32 v19, v35 offset:256
        s_mov_b64 exec, s[{s[2]}:{s[3]}]
        """)
        a.label(lE)
        a("s_waitcnt lgkmcnt(0)")
        a("s_barrier")

    def o_compute(self):
        a = self.a; s = sT
        lB = self.L("oB"); lE = self.L("oE")
        a(f"""
        v_and_b32 v14, 31, v{vLANE}
        v_min_u32 v14, 16, v14
        v_lshlrev_b32 v14, 4, v14
        v_lshrrev_b32 v15, 5, v{vLANE}
        v_lshl_add_u32 v14, v15, 9, v14
        s_cmp_lg_u32 s{sBR}, 0
        s_cbranch_scc1 {lB}
        s_lshl_b32 s{s[0]}, s{sHP}, 12
        s_add_u32 s{s[0]}, s{s[0]}, {L_KVA}
        v_add_u32 v14, s{s[0]}, v14
        ds_read_b128 v[32:35], v14
        ds_read_b128 v[36:39], v14 offset:1024
        ds_read_b128 v[40:43], v14 offset:2048
        ds_read_b128 v[44:47], v14 offset:3072
        s_waitcnt lgkmcnt(2)
        v_mfma_f32_32x32x16_bf16 v[48:63], v[32:35], {vr(ACCQ)}, 0
        v_mfma_f32_32x32x16_bf16 v[48:63], v[36:39], {vr(ACCQ+4)}, v[48:63]
        s_waitcnt lgkmcnt(0)
        v_mfma_f32_32x32x16_bf16 v[64:79], v[40:43], {vr(ACCQ+8)}, 0
        v_mfma_f32_32x32x16_bf16 v[64:79], v[44:47], {vr(ACCQ+12)}, v[64:79]
        s_branch {lE}
        """)
        a.label(lB)
        a(f"""
        s_lshl_b32 s{s[0]}, s{sHP}, 11
        s_add_u32 s{s[0]}, s{s[0]}, {L_KVA}
        v_add_u32 v14, s{s[0]}, v14
        ds_read_b128 v[32:35], v14
        ds_read_b128 v[40:43], v14 offset:1024
        s_waitcnt lgkmcnt(1)
        v_mfma_f32_32x32x16_bf16 v[48:63], v[32:35], {vr(ACCQ)}, 0
        s_waitcnt lgkmcnt(0)
        v_mfma_f32_32x32x16_bf16 v[64:79], v[40:43], {vr(ACCQ+4)}, 0
        s_nop 7
        """)
        a.label(lE)
        a("s_nop 7"); a("s_nop 3")
        for D, out in ((48, 32), (64, 36)):
            a(f"v_add_f32 v14, s{sEPS}, v{D+8}")
            a(f"v_rcp_f32 v14, v14")
            for i in range(8):
                a(f"v_mul_f32 v{D+i}, v14, v{D+i}")
            for q in range(4):
                a(f"v_cvt_pk_bf16_f32 v{out+q}, v{D+2*q}, v{D+2*q+1}")
        a(f"""
        v_and_b32 v14, 31, v{vLANE}
        s_lshl_b32 s{s[0]}, s{sRG}, 5
        v_add_u32 v15, s{s[0]}, v14             ; row
        v_lshlrev_b32 v15, 7, v15
        v_bfe_u32 v16, v14, 1, 3                ; f
        v_lshrrev_b32 v17, 5, v{vLANE}          ; half
        s_lshl_b32 s{s[0]}, s{sHP}, 2
        v_add_u32 v17, s{s[0]}, v17             ; u for a=0
        v_xor_b32 v17, v17, v16
        v_lshl_add_u32 v18, v17, 4, v15
        v_xor_b32 v19, 32, v18                  ; a=1 : u+2 -> xor 2
        ds_write_b128 v18, v[32:35]
        ds_write_b128 v19, v[36:39]
        s_waitcnt lgkmcnt(0)
        s_barrier
        """)
        a(f"""
        v_lshrrev_b32 v17, 5, v{vLANE}
        v_xor_b32 v17, v17, v16
        v_lshl_add_u32 v{vXr[0]}, v17, 4, v15
        v_xor_b32 v{vXr[1]}, 32, v{vXr[0]}
        v_xor_b32 v{vXr[2]}, 64, v{vXr[0]}
        v_xor_b32 v{vXr[3]}, 96, v{vXr[0]}
        """)
        a(f"""
        v_lshlrev_b32 v14, 4, v{vLANE}
        s_lshl_b32 s{s[0]}, s{sWV}, 11
        v_add_u32 v14, s{s[0]}, v14
        ds_read_b128 v[32:35], v14
        ds_read_b128 v[36:39], v14 offset:1024
        s_lshl_b32 s{s[1]}, s{sHG}, 7
        s_waitcnt lgkmcnt(1)
        buffer_store_dwordx4 v[32:35], v{vXa}, {srd(sO)}, s{s[1]} offen sc1
        s_waitcnt lgkmcnt(0)
        buffer_store_dwordx4 v[36:39], v{vXb}, {srd(sO)}, s{s[1]} offen offset:1024 sc1
        """)

    def p3_chunk(self, t, first):
        a = self.a
        b = WF + (t & 1) * 16
        imm = (t & 3) * 16384
        for ks in range(4):
            a(f"ds_read_b128 {vr(b+4*ks)}, v{vXr[ks]} offset:{imm}")
        for ks in range(4):
            a(f"s_waitcnt lgkmcnt({3-ks})")
            c = "0" if (first and ks == 0) else vr(ACCK, 16)
            a(f"v_mfma_f32_32x32x16_bf16 {vr(ACCK,16)}, {X(t,ks)}, {vr(b+4*ks)}, {c}")

    def phase3(self):
        a = self.a; s = sT
        a(f"""
        s_waitcnt vmcnt(0)
        s_barrier
        s_lshl_b32 s{s[0]}, s{sBR}, 4
        s_add_u32 s{s[0]}, s{s[0]}, s{sRT}
        s_lshl_b32 s{s[0]}, s{s[0]}, 10         ; (br*16+rt)*8*128
        s_add_u32 s{s[0]}, s{s[0]}, {WS_FLAG}
        """)
        l1 = self.L("nofl")
        a(f"""
        s_cmp_lg_u32 s{sWV}, 0
        s_cbranch_scc1 {l1}
        s_lshl_b32 s{s[1]}, s{sHG}, 7
        s_add_u32 s{s[1]}, s{s[1]}, s{s[0]}
        v_mov_b32 v14, 0
        v_mov_b32 v15, s{sTAG}
        s_mov_b64 exec, 1
        buffer_store_dword v15, v14, {srd(sWS)}, s{s[1]} offen sc1
        s_mov_b64 exec, -1
        """)
        a.label(l1)
        self.p3_chunk(0, True)
        l2 = self.L("nopoll")
        a(f"""
        s_cmp_lg_u32 s{sWV}, 0
        s_cbranch_scc1 {l2}
        v_and_b32 v14, 7, v{vLANE}
        v_lshlrev_b32 v14, 7, v14
        """)
        self.poll("h2", f"buffer_load_dword v15, v14, {srd(sWS)}, s{s[0]} offen sc1", 15)
        a.label(l2)
        a("s_barrier")
        a(f"s_lshl_b32 s{s[2]}, s{sWV}, 11")
        for t in range(1, 8):
            a(f"""
            s_add_u32 s{s[1]}, s{sHG}, {t}
            s_and_b32 s{s[1]}, s{s[1]}, 7
            s_lshl_b32 s{s[1]}, s{s[1]}, 7
            s_add_u32 m0, s{s[2]}, {t*16384}
            s_nop 0
            buffer_load_dwordx4 v{vXa}, {srd(sO)}, s{s[1]} offen sc1 lds
            buffer_load_dwordx4 v{vXb}, {srd(sO)}, s{s[1]} offen offset:1024 sc1 lds
            """)
        for t in range(1, 8):
            a(f"s_waitcnt vmcnt({2*(7-t)})")
            a("s_barrier")
            if t == 4:
                for r in vXr: a(f"v_xor_b32 v{r}, 0x10000, v{r}")
            self.p3_chunk(t, False)
        for q in range(8):
            a(f"v_cvt_pk_bf16_f32 v{32+q}, v{ACCK+2*q}, v{ACCK+2*q+1}")
        a(f"""
        v_permlane32_swap_b32 v32, v34
        v_permlane32_swap_b32 v33, v35
        v_permlane32_swap_b32 v36, v38
        v_permlane32_swap_b32 v37, v39
        v_and_b32 v14, 31, v{vLANE}
        s_lshl_b32 s{s[0]}, s{sRT}, 7
        s_lshl_b32 s{s[1]}, s{sRG}, 5
        s_add_u32 s{s[0]}, s{s[0]}, s{s[1]}
        v_add_u32 v14, s{s[0]}, v14
        v_lshlrev_b32 v14, 11, v14
        v_lshrrev_b32 v15, 5, v{vLANE}
        v_lshl_add_u32 v14, v15, 4, v14
        s_lshl_b32 s{s[0]}, s{sBR}, 10
        s_lshl_b32 s{s[1]}, s{sHG}, 7
        s_add_u32 s{s[0]}, s{s[0]}, s{s[1]}
        s_lshl_b32 s{s[1]}, s{sHP}, 6
        s_add_u32 s{s[0]}, s{s[0]}, s{s[1]}
        buffer_store_dwordx4 v[32:35], v14, {srd(sOUT)}, s{s[0]} offen
        buffer_store_dwordx4 v[36:39], v14, {srd(sOUT)}, s{s[0]} offen offset:32
        """)
        l3 = self.L("nog")
        a(f"""
        s_or_b32 s{s[0]}, s{sRT}, s{sHG}
        s_or_b32 s{s[0]}, s{s[0]}, s{sWV}
        s_cmp_lg_u32 s{s[0]}, 0
        s_cbranch_scc1 {l3}
        s_add_u32 s{s[1]}, s{sG}, 1
        s_lshl_b32 s{s[2]}, s{sBR}, 8
        v_mov_b32 v14, 0
        v_mov_b32 v15, s{s[1]}
        s_mov_b64 exec, 1
        buffer_store_dword v15, v14, {srd(sWS)}, s{s[2]} offen
        s_mov_b64 exec, -1
        """)
        a.label(l3)

    def write_stamps(self):
        if not self.stamps: return
        a = self.a; s = sT
        a(f"""
        s_lshl_b32 s{s[0]}, s2, 3
        s_add_u32 s{s[0]}, s{s[0]}, s{sWV}
        s_lshl_b32 s{s[0]}, s{s[0]}, 8
        s_add_u32 s{s[0]}, s{s[0]}, {WS_DBG}
        v_lshlrev_b32 v14, 2, v{vLANE}
        buffer_store_dword v31, v14, {srd(sWS)}, s{s[0]} offen
        """)

    def build(self):
        a = self.a
        self.stamp()
        self.prologue()
        self.stamp()
        for t in range(8):
            self.kv_round(t)
            if t in (0, 3): self.stamp()
        self.stamp()
        self.dump(0, ACCK, 32)
        self.k_epilogue()
        self.stamp()
        self.kv_mfma_publish()
        self.stamp()
        self.q_pass()
        self.dump(1, ACCQ, 16)
        a("s_barrier")
        self.stamp()
        self.hop1a()
        self.stamp()
        self.dma_wo(1, 3)
        self.q_epilogue()
        self.dump(2, ACCQ, 16)
        self.stamp()
        a("s_waitcnt vmcnt(0)")
        a("s_barrier")
        a(f"v_xor_b32 v{vWr}, 0x10000, v{vWr}")
        self.wo_regs()
        self.stamp()
        self.hop1b()
        self.stamp()
        self.o_compute()
        self.dump(3, 32, 8)
        self.stamp()
        self.phase3()
        self.stamp()
        self.write_stamps()
        a.label("L_END")
        a("s_endpgm")
        n = a.fix_hazards()
        hdr = f"""; concat_heads / hedgehog + elu linear attention block, fused persistent kernel (generated by gen.py)
; @launch grid=(256,1,1) block=(512,1,1) lds={LDS_BYTES}
.amdgcn_target "amdgcn-amd-amdhsa--gfx950"
.text
.globl {KNAME}
.p2align 8
.type {KNAME},@function
{KNAME}:
"""
        ftr = f""".section .rodata,"a"
.p2align 6
.amdhsa_kernel {KNAME}
  .amdhsa_next_free_vgpr 256
  .amdhsa_next_free_sgpr 102
  .amdhsa_accum_offset 256
  .amdhsa_group_segment_fixed_size 0
  .amdhsa_kernarg_size 80
  .amdhsa_user_sgpr_count 2
  .amdhsa_user_sgpr_kernarg_segment_ptr 1
  .amdhsa_system_sgpr_workgroup_id_x 1
.end_amdhsa_kernel
"""
        return hdr + a.text() + ftr, n

if __name__ == "__main__":
    ap = argparse.ArgumentParser()
    ap.add_argument("-o", default="concat_heads__linear_kernel_hedgehog__linear_attn_block__prompt.s")
    ap.add_argument("--norot", action="store_true")
    ap.add_argument("--debug", action="store_true")
    ap.add_argument("--stamps", action="store_true")
    args = ap.parse_args()
    g = Gen(rot=not args.norot, debug=args.debug, stamps=args.stamps)
    txt, n = g.build()
    open(args.o, "w").write(txt)
    print(f"wrote {args.o}: {len(txt)} bytes, {n} hazard nops inserted")
```

```python
import sys, argparse
sys.path.insert(0, "gen")
from asmlib import Asm

KNAME = "concat_heads__linear_kernel_hedgehog__linear_attn_block__prompt_kernel"

WS_G      = 0
WS_FLAG   = 0x1000
WS_R      = 0x10000
WS_P      = 0x40000
WS_O      = 0x300000
WS_DBG    = 0x800000
WS_SIZE   = 0x10000000

SLOT = 32768
L_PHI = 3 * SLOT
L_V   = 4 * SLOT
L_KVA = 4 * SLOT
LDS_BYTES = 163840

sX, sW_, sWO, sWS, sOUT, sPHI, sO = 24, 28, 32, 36, 40, 44, 48
sBR, sRT, sHG, sC0, sWV, sRG, sHP, sTAG, sG = 52, 53, 54, 55, 56, 57, 58, 59, 60
sLOG2E, sEPS = 61, 62
sT = list(range(64, 96))
def srd(b): return f"s[{b}:{b+3}]"

vLANE, vXa, vXb, vW, vWq, vWo, vWr = 1, 2, 3, 4, 5, 6, 7
vXr = [8, 9, 10, 11]
WF = 32
ACCK, ACCV, ACCQ = 64, 80, 96
WPH = 112
XB = 128
def vr(b, n=4): return f"v[{b}:{b+n-1}]"
def X(t, ks): return vr(XB + 16*t + 4*ks)

class Gen:
    def __init__(self, rot=True, debug=False, stamps=False, spin=20000, dbgwg=None, stampsel=None):
        self.dbgwg = dbgwg; self.stampsel = stampsel; self.stampidx = 0
        self.a = Asm()
        self.rot = rot; self.debug = debug; self.stamps = stamps; self.spin = spin
        self.nstamp = 0
        self.lbl = 0
    def L(self, base):
        self.lbl += 1
        return f"L_{base}_{self.lbl}"
    def stamp(self):
        if not self.stamps: return
        idx = self.stampidx; self.stampidx += 1
        if self.stampsel is not None and idx not in self.stampsel: return
        n = self.nstamp; self.nstamp += 1
        assert n < 40
        self.a(f"""
        s_memtime s[96:97]
        s_waitcnt lgkmcnt(0)
        v_writelane_b32 v31, s96, {n}
        """)
    def dump(self, slot, base, n):
        if not self.debug: return
        a = self.a
        assert n <= 32
        a(f"""
        s_lshl_b32 s98, s2, 3
        s_add_u32 s98, s98, s{sWV}
        s_add_u32 s98, s98, {slot*2048}
        s_lshl_b32 s98, s98, 13
        s_add_u32 s98, s98, {WS_DBG}
        v_lshlrev_b32 v30, 2, v{vLANE}
        s_nop 12
        """)
        for i in range(n):
            a(f"buffer_store_dword v{base+i}, v30, {srd(sWS)}, s98 offen offset:{256*i if i < 16 else 0}" if i < 16 else
              f"buffer_store_dword v{base+i}, v29, {srd(sWS)}, s98 offen offset:{256*(i-16)}")
            if i == 15 and n > 16:
                a(f"v_add_u32 v29, 4096, v30")
        a("s_waitcnt vmcnt(0)")

    def prologue(self):
        a = self.a
        t = sT
        a(f"""
        s_cmp_ge_u32 s2, 0x100
        s_cbranch_scc1 L_END
        s_load_dwordx16 s[4:19], s[0:1], 0
        s_load_dwordx2 s[20:21], s[0:1], 72
        s_and_b32 s{t[0]}, s2, 7
        s_lshr_b32 s{t[1]}, s2, 3
        s_lshr_b32 s{sBR}, s{t[0]}, 2
        s_and_b32 s{t[2]}, s{t[0]}, 1
        s_bfe_u32 s{t[3]}, s{t[0]}, 0x10001
        s_lshr_b32 s{t[4]}, s{t[1]}, 2
        s_and_b32 s{t[5]}, s{t[1]}, 3
        s_lshl_b32 s{t[6]}, s{t[5]}, 1
        s_add_u32 s{sC0}, s{t[4]}, s{t[6]}
        s_and_b32 s{sC0}, s{sC0}, {7 if self.rot else 0}
        s_lshl_b32 s{t[2]}, s{t[2]}, 3
        s_add_u32 s{sRT}, s{t[2]}, s{t[4]}
        s_lshl_b32 s{t[3]}, s{t[3]}, 2
        s_add_u32 s{sHG}, s{t[3]}, s{t[5]}
        v_and_b32 v{vLANE}, 63, v0
        v_lshrrev_b32 v14, 6, v0
        v_lshrrev_b32 v15, 3, v{vLANE}
        v_readfirstlane_b32 s{sWV}, v14
        v_and_b32 v16, 7, v{vLANE}
        v_lshrrev_b32 v17, 4, v{vLANE}
        s_and_b32 s{sRG}, s{sWV}, 3
        s_lshr_b32 s{sHP}, s{sWV}, 2
        s_mov_b32 s{sLOG2E}, 0x3fb8aa3b
        s_mov_b32 s{sEPS}, 0x358637bd
        s_lshl_b32 s{t[0]}, s{sRT}, 7
        s_lshl_b32 s{t[1]}, s{sWV}, 4
        s_add_u32 s{t[0]}, s{t[0]}, s{t[1]}
        v_add_u32 v18, s{t[0]}, v15
        v_lshlrev_b32 v18, 10, v18
        v_xor_b32 v19, v16, v17
        v_lshl_add_u32 v{vXa}, v19, 4, v18
        v_xor_b32 v{vXb}, 64, v{vXa}
        v_add_u32 v{vXb}, 7168, v{vXb}
        v_and_b32 v19, 1, v17
        v_lshlrev_b32 v19, 2, v19
        v_xor_b32 v19, v16, v19
        v_lshlrev_b32 v19, 4, v19
        s_lshl_b32 s{t[0]}, s{sWV}, 3
        v_add_u32 v20, s{t[0]}, v15
        s_lshl_b32 s{t[1]}, s{sHG}, 7
        v_add_u32 v19, s{t[1]}, v19
        v_mul_u32_u24 v21, 3072, v20
        v_add_u32 v{vWq}, v21, v19
        v_add_u32 v{vW}, 1024, v{vWq}
        v_lshl_add_u32 v{vWo}, v20, 10, v19
        v_lshrrev_b32 v18, 5, v{vLANE}          ; half
        v_bfe_u32 v19, v{vLANE}, 2, 2           ; r
        v_and_b32 v20, 3, v{vLANE}              ; c
        v_and_b32 v21, 1, v17                   ; g1
        v_lshrrev_b32 v22, 1, v19               ; r>>1
        v_xor_b32 v22, s{sHP}, v22              ; hp ^ (r>>1)
        v_lshlrev_b32 v22, 2, v22
        v_lshl_add_u32 v22, v21, 1, v22
        v_lshrrev_b32 v23, 1, v20
        v_add_u32 v22, v22, v23                 ; unit
        v_lshlrev_b32 v22, 4, v22
        v_and_b32 v23, 1, v20
        v_lshl_add_u32 v22, v23, 3, v22
        v_lshl_add_u32 v22, v19, 7, v22
        v_lshl_add_u32 v{vWr}, v18, 12, v22
        ; ---- vXr
        v_and_b32 v22, 31, v{vLANE}             ; l31
        v_lshrrev_b32 v23, 4, v22               ; l31>>4
        s_lshl_b32 s{t[0]}, s{sRG}, 1
        v_add_u32 v23, s{t[0]}, v23             ; p>>1
        v_lshlrev_b32 v23, 12, v23
        v_bfe_u32 v24, v22, 3, 1
        v_lshl_add_u32 v23, v24, 10, v23
        v_and_b32 v24, 7, v22
        v_lshl_add_u32 v23, v24, 7, v23
        v_add_u32 v23, 2048, v23
        v_bfe_u32 v24, v22, 1, 3                ; f
        v_xor_b32 v24, v18, v24
        v_lshl_add_u32 v{vXr[0]}, v24, 4, v23
        v_xor_b32 v{vXr[1]}, 32, v{vXr[0]}
        v_xor_b32 v{vXr[2]}, 64, v{vXr[0]}
        v_xor_b32 v{vXr[3]}, 96, v{vXr[0]}
        v_bfe_u32 v24, v0, 1, 2
        v_xor_b32 v24, 2, v24
        v_lshlrev_b32 v24, 4, v24
        v_lshl_add_u32 v24, v0, 6, v24
        v_add_u32 v24, {L_V}, v24
        v_xor_b32 v25, 16, v24
        v_mov_b32 v26, 0x3f803f80
        v_mov_b32 v27, 0x3f803f80
        v_mov_b32 v28, 0x3f803f80
        v_mov_b32 v29, 0x3f803f80
        s_waitcnt lgkmcnt(0)
        ; ---- SRDs
        s_cmp_eq_u32 s{sBR}, 0
        s_cselect_b32 s{sX}, s4, s12
        s_cselect_b32 s{sX+1}, s5, s13
        s_cselect_b32 s{sW_}, s6, s14
        s_cselect_b32 s{sW_+1}, s7, s15
        s_cselect_b32 s{sWO}, s10, s16
        s_cselect_b32 s{sWO+1}, s11, s17
        s_mov_b32 s{sX+2}, 0x200000
        s_mov_b32 s{sX+3}, 0x20000
        s_mov_b32 s{sW_+2}, 0x180000
        s_mov_b32 s{sW_+3}, 0x20000
        s_mov_b32 s{sWO+2}, 0x80000
        s_mov_b32 s{sWO+3}, 0x20000
        s_mov_b32 s{sWS}, s20
        s_mov_b32 s{sWS+1}, s21
        s_mov_b32 s{sWS+2}, {WS_SIZE}
        s_mov_b32 s{sWS+3}, 0x20000
        s_mov_b32 s{sOUT}, s18
        s_mov_b32 s{sOUT+1}, s19
        s_mov_b32 s{sOUT+2}, 0x400000
        s_mov_b32 s{sOUT+3}, 0x20000
        s_mov_b32 s{sPHI}, s8
        s_mov_b32 s{sPHI+1}, s9
        s_mov_b32 s{sPHI+2}, 0x4000
        s_mov_b32 s{sPHI+3}, 0x20000
        s_lshl_b32 s{t[0]}, s{sBR}, 21
        s_add_u32 s{t[0]}, s{t[0]}, {WS_O}
        s_add_u32 s{sO}, s20, s{t[0]}
        s_addc_u32 s{sO+1}, s21, 0
        s_mov_b32 s{sO+2}, 0x200000
        s_mov_b32 s{sO+3}, 0x20000
        s_lshl_b32 s{t[0]}, s{sBR}, 8
        s_load_dword s{sG}, s[20:21], s{t[0]}
        """)
        l1 = self.L("nophi")
        a(f"""
        s_cmp_lg_u32 s{sBR}, 0
        s_cbranch_scc1 {l1}
        s_cmp_ge_u32 s{sWV}, 2
        s_cbranch_scc1 {l1}
        s_lshl_b32 s{t[0]}, s{sWV}, 10
        s_add_u32 m0, s{t[0]}, {L_PHI}
        s_lshl_b32 s{t[1]}, s{sHG}, 11
        s_add_u32 s{t[1]}, s{t[1]}, s{t[0]}
        v_lshlrev_b32 v14, 4, v{vLANE}
        buffer_load_dwordx4 v14, {srd(sPHI)}, s{t[1]} offen lds
        """)
        a.label(l1)
        for t_ in range(3):
            self.dma_round(t_)
        a(f"""
        ds_write_b128 v24, v[26:29]
        ds_write_b128 v25, v[26:29]
        """)

    def chunk_sgpr(self, add, dst):
        self.a(f"""
        s_add_u32 s{dst}, s{sC0}, {add}
        s_and_b32 s{dst}, s{dst}, 7
        """)

    def dma_round(self, t):
        a = self.a; s = sT
        slot = (t & 3) * SLOT
        self.chunk_sgpr(t, s[8])
        a(f"""
        s_lshl_b32 s{s[9]}, s{sWV}, 12
        s_add_u32 m0, s{s[9]}, {slot}
        s_mul_i32 s{s[10]}, s{s[8]}, {64*3072}
        s_lshl_b32 s{s[11]}, s{s[8]}, 7
        buffer_load_dwordx4 v{vW}, {srd(sW_)}, s{s[10]} offen lds
        buffer_load_dwordx4 v{vW}, {srd(sW_)}, s{s[10]} offen offset:1024 lds
        s_add_u32 m0, s{s[9]}, {slot + 2048}
        s_nop 0
        buffer_load_dwordx4 v{vXa}, {srd(sX)}, s{s[11]} offen lds
        buffer_load_dwordx4 v{vXb}, {srd(sX)}, s{s[11]} offen offset:1024 lds
        """)

    def dma_wq(self, b):
        a = self.a; s = sT
        a(f"s_lshl_b32 s{s[9]}, s{sWV}, 12")
        for j in range(4):
            self.chunk_sgpr(4*b + j, s[8])
            a(f"""
            s_add_u32 m0, s{s[9]}, {b*SLOT + j*1024}
            s_mul_i32 s{s[10]}, s{s[8]}, {64*3072}
            buffer_load_dwordx4 v{vWq}, {srd(sW_)}, s{s[10]} offen lds
            """)

    def dma_wo(self, b, slot):
        a = self.a; s = sT
        a(f"s_lshl_b32 s{s[9]}, s{sWV}, 12")
        for j in range(4):
            a(f"""
            s_add_u32 s{s[8]}, s{sHG}, {4*b + j}
            s_and_b32 s{s[8]}, s{s[8]}, 7
            s_add_u32 m0, s{s[9]}, {slot*SLOT + j*1024}
            s_lshl_b32 s{s[10]}, s{s[8]}, 16
            buffer_load_dwordx4 v{vWo}, {srd(sWO)}, s{s[10]} offen lds
            """)

    def toggle_slotpair(self):
        a = self.a
        for r in [vWr] + vXr:
            a(f"v_xor_b32 v{r}, 0x10000, v{r}")

    def wphi_read(self):
        a = self.a
        a(f"""
        v_lshrrev_b32 v14, 5, v{vLANE}          ; half_k
        v_bfe_u32 v15, v{vLANE}, 2, 2           ; r
        v_lshl_add_u32 v14, v14, 2, v15         ; d = 4*half + r
        v_lshlrev_b32 v14, 5, v14               ; *32
        s_lshl_b32 s{sT[0]}, s{sHP}, 10
        s_add_u32 s{sT[0]}, s{sT[0]}, {L_PHI}
        v_add_u32 v14, s{sT[0]}, v14
        v_bfe_u32 v15, v{vLANE}, 4, 1           ; g1
        v_bfe_u32 v16, v{vLANE}, 1, 1           ; c'>>1
        v_lshl_add_u32 v17, v15, 1, v16         ; sigma_k = 2*g1 + (c'>>1)
        v_lshl_add_u32 v18, v16, 1, v15         ; sigma_q = 2*(c'>>1) + g1
        v_lshl_add_u32 v17, v17, 3, v14
        v_lshl_add_u32 v18, v18, 3, v14
        ds_read_b64_tr_b16 v[{WPH+0}:{WPH+1}], v17
        ds_read_b64_tr_b16 v[{WPH+2}:{WPH+3}], v17 offset:256
        ds_read_b64_tr_b16 v[{WPH+4}:{WPH+5}], v17 offset:512
        ds_read_b64_tr_b16 v[{WPH+6}:{WPH+7}], v17 offset:768
        ds_read_b64_tr_b16 v[{WPH+8}:{WPH+9}], v18
        ds_read_b64_tr_b16 v[{WPH+10}:{WPH+11}], v18 offset:256
        ds_read_b64_tr_b16 v[{WPH+12}:{WPH+13}], v18 offset:512
        ds_read_b64_tr_b16 v[{WPH+14}:{WPH+15}], v18 offset:768
        v_bfe_u32 v14, v{vLANE}, 2, 1
        v_mov_b32 v15, 0x80008000
        v_mul_lo_u32 v14, v14, v15
        s_waitcnt lgkmcnt(0)
        """)
        for i in range(16):
            a(f"v_xor_b32 v{WPH+i}, v14, v{WPH+i}")

    def kv_round(self, t):
        a = self.a
        slot_imm = (t & 1) * SLOT
        a("s_waitcnt vmcnt(8) lgkmcnt(0)" if t == 0 else "s_waitcnt vmcnt(8)")
        a("s_barrier")
        if t == 0:
            l = self.L("nowphi")
            a(f"s_cmp_lg_u32 s{sBR}, 0")
            a(f"s_cbranch_scc1 {l}")
            self.wphi_read()
            a.label(l)
            a("s_barrier")
        if t + 3 <= 7: self.dma_round(t + 3)
        elif t == 5: self.dma_wq(0)
        elif t == 6: self.dma_wq(1)
        elif t == 7: self.dma_wo(0, 2)
        def reads(ks):
            a(f"ds_read_b128 {X(t,ks)}, v{vXr[ks]} offset:{slot_imm}")
            for part in range(2):
                for rd in range(2):
                    d = WF + ks*8 + part*4 + rd*2
                    a(f"ds_read_b64_tr_b16 v[{d}:{d+1}], v{vWr} offset:{slot_imm + ks*8192 + part*1024 + rd*512}")
        def mf(ks):
            ck = "0" if (t == 0 and ks == 0) else vr(ACCK, 16)
            cv = "0" if (t == 0 and ks == 0) else vr(ACCV, 16)
            a(f"v_mfma_f32_32x32x16_bf16 {vr(ACCK,16)}, {vr(WF+ks*8)}, {X(t,ks)}, {ck}")
            a(f"v_mfma_f32_32x32x16_bf16 {vr(ACCV,16)}, {vr(WF+ks*8+4)}, {X(t,ks)}, {cv}")
        reads(0); reads(1); reads(2)
        a("s_waitcnt lgkmcnt(10)"); mf(0)
        reads(3)
        a("s_waitcnt lgkmcnt(10)"); mf(1)
        a("s_waitcnt lgkmcnt(5)"); mf(2)
        a("s_waitcnt lgkmcnt(0)"); mf(3)
        if t % 2 == 1: self.toggle_slotpair()

    def softmax(self, D, out):
        a = self.a
        d = lambda i: f"v{D+i}"
        a(f"""
        v_max3_f32 v14, {d(0)}, {d(1)}, {d(2)}
        v_max3_f32 v15, {d(3)}, {d(4)}, {d(5)}
        v_max3_f32 v16, {d(6)}, {d(7)}, {d(8)}
        v_max3_f32 v17, {d(9)}, {d(10)}, {d(11)}
        v_max3_f32 v18, {d(12)}, {d(13)}, {d(14)}
        v_max3_f32 v14, v14, v15, {d(15)}
        v_max3_f32 v16, v16, v17, v18
        v_max_f32 v14, v14, v16
        v_mul_f32 v14, s{sLOG2E}, v14
        """)
        for i in range(16):
            a(f"v_fma_f32 {d(i)}, {d(i)}, s{sLOG2E}, -v14")
        for i in range(16):
            a(f"v_exp_f32 {d(i)}, {d(i)}")
        a(f"""
        v_add_f32 v15, {d(0)}, {d(1)}
        v_add_f32 v16, {d(2)}, {d(3)}
        v_add_f32 v17, {d(4)}, {d(5)}
        v_add_f32 v18, {d(6)}, {d(7)}
        v_add_f32 v19, {d(8)}, {d(9)}
        v_add_f32 v20, {d(10)}, {d(11)}
        v_add_f32 v21, {d(12)}, {d(13)}
        v_add_f32 v14, {d(14)}, {d(15)}
        v_add_f32 v15, v15, v16
        v_add_f32 v17, v17, v18
        v_add_f32 v19, v19, v20
        v_add_f32 v21, v21, v14
        v_add_f32 v15, v15, v17
        v_add_f32 v19, v19, v21
        v_add_f32 v15, v15, v19
        v_rcp_f32 v15, v15
        """)
        for i in range(16):
            a(f"v_mul_f32 {d(i)}, v15, {d(i)}")
        for q in range(8):
            a(f"v_cvt_pk_bf16_f32 v{out+q}, {d(2*q)}, {d(2*q+1)}")

    def elu(self, D, out):
        a = self.a
        for i in range(16):
            a(f"v_mul_f32 v{14+i}, s{sLOG2E}, v{D+i}")
        for i in range(16):
            a(f"v_exp_f32 v{14+i}, v{14+i}")
        for i in range(16):
            a(f"v_add_f32 v{D+i}, 1.0, v{D+i}")
        for i in range(16):
            a(f"v_med3_f32 v{D+i}, v{14+i}, 1.0, v{D+i}")
        for i in range(16):
            a(f"v_add_f32 v{D+i}, s{sEPS}, v{D+i}")
        for q in range(8):
            a(f"v_cvt_pk_bf16_f32 v{out+q}, v{D+2*q}, v{D+2*q+1}")

    def k_epilogue(self):
        a = self.a; s = sT
        a("s_barrier")
        a(f"""
        v_and_b32 v22, 31, v{vLANE}
        s_lshl_b32 s{s[0]}, s{sRG}, 5
        v_add_u32 v23, s{s[0]}, v22            ; row
        v_lshlrev_b32 v23, 6, v23              ; row*64
        v_bfe_u32 v24, v22, 1, 2               ; swz
        v_lshrrev_b32 v25, 5, v{vLANE}         ; half
        v_xor_b32 v26, v25, v24
        v_lshl_add_u32 v26, v26, 4, v23
        s_lshl_b32 s{s[1]}, s{sHP}, 14
        s_add_u32 s{s[2]}, s{s[1]}, {L_V}
        v_add_u32 v27, s{s[2]}, v26
        """)
        for q in range(8):
            a(f"v_cvt_pk_bf16_f32 v{40+q}, v{ACCV+2*q}, v{ACCV+2*q+1}")
        a(f"ds_write_b128 v27, v[40:43]")
        a(f"ds_write_b128 v27, v[44:47] offset:8192")
        lB = self.L("kepiB"); lE = self.L("kepiE")
        a(f"s_cmp_lg_u32 s{sBR}, 0")
        a(f"s_cbranch_scc1 {lB}")
        for q in range(8):
            a(f"v_cvt_pk_bf16_f32 v{32+q}, v{ACCK+2*q}, v{ACCK+2*q+1}")
        a(f"v_mfma_f32_32x32x16_bf16 v[48:63], {vr(WPH)}, v[32:35], 0")
        a(f"v_mfma_f32_32x32x16_bf16 v[64:79], {vr(WPH+4)}, v[36:39], 0")
        a(f"""
        v_lshlrev_b32 v28, 1, v25
        v_xor_b32 v28, v28, v24
        v_lshl_add_u32 v28, v28, 4, v23
        s_add_u32 s{s[2]}, s{s[1]}, {L_PHI}
        v_add_u32 v28, s{s[2]}, v28
        v_xor_b32 v29, 16, v28
        """)
        self.softmax(48, 32)
        a("ds_write_b128 v28, v[32:35]")
        a("ds_write_b128 v29, v[36:39]")
        self.softmax(64, 40)
        a("ds_write_b128 v28, v[40:43] offset:8192")
        a("ds_write_b128 v29, v[44:47] offset:8192")
        a(f"s_branch {lE}")
        a.label(lB)
        a(f"""
        s_lshl_b32 s{s[2]}, s{sHP}, 13
        s_add_u32 s{s[2]}, s{s[2]}, {L_PHI}
        v_add_u32 v30, s{s[2]}, v26
        v_xor_b32 v31, 32, v30
        """ if not self.stamps else f"""
        s_lshl_b32 s{s[2]}, s{sHP}, 13
        s_add_u32 s{s[2]}, s{s[2]}, {L_PHI}
        v_add_u32 v30, s{s[2]}, v26
        v_xor_b32 v13, 32, v30
        """)
        self.elu(ACCK, 32)
        a("ds_write_b128 v30, v[32:35]")
        a(f"ds_write_b128 v{31 if not self.stamps else 13}, v[36:39]")
        a.label(lE)
        a("s_waitcnt vmcnt(4) lgkmcnt(0)")
        a("s_barrier")

    def kv_mfma_publish(self):
        a = self.a; s = sT
        lskip = self.L("nokv")
        a(f"s_cmp_ge_u32 s{sWV}, 4")
        a(f"s_cbranch_scc1 {lskip}")
        a(f"""
        v_lshrrev_b32 v14, 5, v{vLANE}          ; half
        v_bfe_u32 v15, v{vLANE}, 2, 2           ; r
        v_and_b32 v16, 3, v{vLANE}              ; c
        v_bfe_u32 v17, v{vLANE}, 4, 1           ; g1
        v_lshrrev_b32 v18, 1, v16
        v_lshl_add_u32 v18, v17, 1, v18         ; u = 2g1 + (c>>1)
        v_lshrrev_b32 v19, 1, v15               ; r>>1
        v_xor_b32 v20, v18, v19                 ; rd=0 : u ^ (r>>1)
        v_xor_b32 v21, 2, v20                   ; rd=1 : u ^ (2 + (r>>1))
        v_lshl_add_u32 v22, v14, 3, v15         ; 8half + r
        v_lshlrev_b32 v22, 6, v22
        v_and_b32 v23, 1, v16
        v_lshl_add_u32 v22, v23, 3, v22
        v_lshl_add_u32 v20, v20, 4, v22
        v_lshl_add_u32 v21, v21, 4, v22
        v_add_u32 v21, 256, v21                 ; +4 rows
        s_lshr_b32 s{s[0]}, s{sWV}, s{sBR}
        s_lshl_b32 s{s[0]}, s{s[0]}, 13
        s_add_u32 s{s[0]}, s{s[0]}, {L_PHI}
        s_lshl_b32 s{s[1]}, s{sWV}, 13
        s_add_u32 s{s[1]}, s{s[1]}, {L_V}
        v_add_u32 v22, s{s[0]}, v20
        v_add_u32 v23, s{s[0]}, v21
        v_add_u32 v24, s{s[1]}, v20
        v_add_u32 v25, s{s[1]}, v21
        """)
        def rd(j):
            b = 32 + (j & 1)*8
            a(f"ds_read_b64_tr_b16 v[{b}:{b+1}], v22 offset:{j*1024}")
            a(f"ds_read_b64_tr_b16 v[{b+2}:{b+3}], v23 offset:{j*1024}")
            a(f"ds_read_b64_tr_b16 v[{b+4}:{b+5}], v24 offset:{j*1024}")
            a(f"ds_read_b64_tr_b16 v[{b+6}:{b+7}], v25 offset:{j*1024}")
        rd(0)
        for j in range(8):
            if j + 1 < 8:
                rd(j+1); a("s_waitcnt lgkmcnt(4)")
            else:
                a("s_waitcnt lgkmcnt(0)")
            b = 32 + (j & 1)*8
            c = "0" if j == 0 else "v[48:63]"
            a(f"v_mfma_f32_32x32x16_bf16 v[48:63], v[{b}:{b+3}], v[{b+4}:{b+7}], {c}")
        a(f"""
        s_waitcnt lgkmcnt(0)
        s_add_u32 s{sTAG}, s{sG}, 1
        s_mul_i32 s{sTAG}, s{sTAG}, 0x9E3779B1
        """)
        a(f"""
        v_and_b32 v16, 15, v{vLANE}
        v_lshl_add_u32 v16, v14, 4, v16         ; rho
        v_lshlrev_b32 v16, 4, v16
        s_lshl_b32 s{s[0]}, s{sRT}, 9
        v_add_u32 v16, s{s[0]}, v16
        s_lshl_b32 s{s[0]}, s{sBR}, 3
        s_add_u32 s{s[0]}, s{s[0]}, s{sHG}
        s_lshl_b32 s{s[0]}, s{s[0]}, 2
        s_add_u32 s{s[0]}, s{s[0]}, s{sWV}
        s_lshl_b32 s{s[0]}, s{s[0]}, 15         ; *4*8192
        s_add_u32 s{s[0]}, s{s[0]}, {WS_P}
        v_and_b32 v17, 1, v{vLANE}
        v_cmp_eq_u32 vcc, 1, v17
        """)
        lB = self.L("pubB"); lS = self.L("pubS")
        a(f"s_cmp_lg_u32 s{sBR}, 0")
        a(f"s_cbranch_scc1 {lB}")
        for q in range(8):
            a(f"v_cvt_pk_bf16_f32 v{64 + 4*(q>>1) + (q&1)}, v{48+2*q}, v{48+2*q+1}")
        for q in range(8):
            a(f"v_mov_b32 v{80+q}, 0")
        for q in range(8):
            a(f"v_permlane16_swap_b32 v{64 + 4*(q>>1) + (q&1)}, v{80+q}")
        for qd in range(4):
            a(f"v_mov_b32 v{64+4*qd+2}, s{sTAG}")
            a(f"v_cndmask_b32 v{64+4*qd+3}, v{80+2*qd}, v{80+2*qd+1}, vcc")
        a(f"s_branch {lS}")
        a.label(lB)
        lodd = self.L("pubBodd"); lBd = self.L("pubBd")
        a(f"s_bitcmp1_b32 s{sWV}, 0")
        a(f"s_cbranch_scc1 {lodd}")
        for q in range(4):
            a(f"v_cvt_pk_bf16_f32 v{64+4*q}, v{48+2*q}, v{48+2*q+1}")
        a(f"s_branch {lBd}")
        a.label(lodd)
        for q in range(4):
            a(f"v_cvt_pk_bf16_f32 v{64+4*q}, v{56+2*q}, v{56+2*q+1}")
        a.label(lBd)
        for q in range(4):
            a(f"v_mov_b32 v{64+4*q+3}, 0")
            a(f"v_mov_b32 v{64+4*q+1}, 0")
            a(f"v_mov_b32 v{64+4*q+2}, s{sTAG}")
        for q in range(4):
            a(f"v_permlane16_swap_b32 v{64+4*q}, v{64+4*q+3}")
        a.label(lS)
        a(f"""
        s_mov_b32 exec_lo, 0xffff
        s_mov_b32 exec_hi, 0xffff
        """)
        for qd in range(4):
            a(f"s_add_u32 s{s[1]}, s{s[0]}, {qd*8192}")
            a(f"buffer_store_dwordx4 v[{64+4*qd}:{64+4*qd+3}], v16, {srd(sWS)}, s{s[1]} offen sc1")
        a("s_mov_b64 exec, -1")
        a.label(lskip)
        a(f"""
        s_waitcnt lgkmcnt(0)
        s_add_u32 s{sTAG}, s{sG}, 1
        s_mul_i32 s{sTAG}, s{sTAG}, 0x9E3779B1
        """)

    def q_pass(self):
        a = self.a
        def rd(t, lo, hi):
            b = WF + (t & 1)*16
            for i in range(lo, hi):
                ks, r_ = i >> 1, i & 1
                d = b + ks*4 + r_*2
                a(f"ds_read_b64_tr_b16 v[{d}:{d+1}], v{vWr} offset:{(t>>2)*SLOT + ks*8192 + (t&3)*1024 + r_*512}")
        rd(0, 0, 8)
        for t in range(8):
            if t + 1 < 8:
                rd(t+1, 0, 7); a("s_waitcnt lgkmcnt(7)"); rd(t+1, 7, 8)
            else:
                a("s_waitcnt lgkmcnt(0)")
            b = WF + (t & 1)*16
            for ks in range(4):
                c = "0" if (t == 0 and ks == 0) else vr(ACCQ, 16)
                a(f"v_mfma_f32_32x32x16_bf16 {vr(ACCQ,16)}, {vr(b+ks*4)}, {X(t,ks)}, {c}")

    def poll(self, name, load, check_reg, after_fail=""):
        a = self.a; s = sT
        lp = self.L(name + "_poll"); ld = self.L(name + "_done")
        a(f"s_mov_b32 s{s[20]}, 0")
        a.label(lp)
        a(load)
        a(f"""
        s_waitcnt vmcnt(0)
        v_cmp_ne_u32 vcc, s{sTAG}, v{check_reg}
        s_cbranch_vccz {ld}
        s_add_u32 s{s[20]}, s{s[20]}, 1
        s_cmp_lt_u32 s{s[20]}, {self.spin}
        s_cbranch_scc0 {ld}
        s_sleep 1
        s_branch {lp}
        """)
        a.label(ld)

    def hop1a(self):
        a = self.a; s = sT
        a(f"""
        v_and_b32 v14, 15, v{vLANE}
        v_lshlrev_b32 v14, 9, v14
        v_lshrrev_b32 v15, 4, v{vLANE}
        s_lshl_b32 s{s[0]}, s{sWV}, 2
        v_add_u32 v15, s{s[0]}, v15             ; rho
        v_lshl_add_u32 v14, v15, 4, v14
        s_lshl_b32 s{s[0]}, s{sBR}, 3
        s_add_u32 s{s[0]}, s{s[0]}, s{sHG}
        s_lshl_b32 s{s[0]}, s{s[0]}, 4
        s_add_u32 s{s[0]}, s{s[0]}, s{sRT}
        s_lshl_b32 s{s[1]}, s{s[0]}, 13
        s_add_u32 s{s[1]}, s{s[1]}, {WS_P}
        """)
        self.poll("h1a", f"buffer_load_dwordx4 v[32:35], v14, {srd(sWS)}, s{s[1]} offen sc1", 34)
        a(f"""
        v_lshlrev_b32 v36, 16, v32
        v_and_b32 v37, 0xffff0000, v32
        v_lshlrev_b32 v38, 16, v33
        v_and_b32 v39, 0xffff0000, v33
        v_lshlrev_b32 v40, 16, v35
        v_and_b32 v41, 0xffff0000, v35
        """)
        for ror in (8, 4, 2, 1):
            for i in range(6):
                a(f"v_add_f32_dpp v{36+i}, v{36+i}, v{36+i} row_ror:{ror} row_mask:0xf bank_mask:0xf")
        a(f"""
        v_cvt_pk_bf16_f32 v44, v36, v37
        v_cvt_pk_bf16_f32 v45, v38, v39
        v_mov_b32 v46, s{sTAG}
        v_cvt_pk_bf16_f32 v47, v40, v41
        v_lshlrev_b32 v15, 4, v15               ; rho*16
        s_lshl_b32 s{s[1]}, s{s[0]}, 9          ; *32*16
        s_add_u32 s{s[1]}, s{s[1]}, {WS_R}
        s_mov_b32 exec_lo, 0x00010001
        s_mov_b32 exec_hi, 0x00010001
        buffer_store_dwordx4 v[44:47], v15, {srd(sWS)}, s{s[1]} offen sc1
        s_mov_b64 exec, -1
        """)

    def q_epilogue(self):
        a = self.a
        lB = self.L("qepiB"); lE = self.L("qepiE")
        a(f"s_cmp_lg_u32 s{sBR}, 0")
        a(f"s_cbranch_scc1 {lB}")
        for q in range(8):
            a(f"v_cvt_pk_bf16_f32 v{32+q}, v{ACCQ+2*q}, v{ACCQ+2*q+1}")
        a(f"v_mfma_f32_32x32x16_bf16 v[48:63], {vr(WPH+8)}, v[32:35], 0")
        a(f"v_mfma_f32_32x32x16_bf16 v[64:79], {vr(WPH+12)}, v[36:39], 0")
        self.softmax(48, ACCQ)
        self.softmax(64, ACCQ+8)
        a(f"s_branch {lE}")
        a.label(lB)
        self.elu(ACCQ, 32)
        for q in range(8):
            a(f"v_mov_b32 v{ACCQ+q}, v{32+q}")
        a.label(lE)

    def wo_regs(self):
        a = self.a
        cnt = 0
        for t in range(8):
            for ks in range(4):
                for r_ in range(2):
                    d = XB + 16*t + 4*ks + 2*r_
                    a(f"ds_read_b64_tr_b16 v[{d}:{d+1}], v{vWr} offset:{(t>>2)*SLOT + ks*8192 + (t&3)*1024 + r_*512}")
                    cnt += 1
                    if cnt % 8 == 0: a("s_waitcnt lgkmcnt(7)")
        a("s_waitcnt lgkmcnt(0)")

    def hop1b(self):
        a = self.a; s = sT
        a(f"""
        v_lshlrev_b32 v14, 4, v0
        s_lshl_b32 s{s[0]}, s{sBR}, 3
        s_add_u32 s{s[0]}, s{s[0]}, s{sHG}
        s_lshl_b32 s{s[0]}, s{s[0]}, 13
        s_add_u32 s{s[0]}, s{s[0]}, {WS_R}
        """)
        self.poll("h1b", f"buffer_load_dwordx4 v[32:35], v14, {srd(sWS)}, s{s[0]} offen sc1", 34)
        lB = self.L("h1bB"); lE = self.L("h1bE")
        a(f"""
        v_lshrrev_b32 v15, 7, v0                ; h
        v_bfe_u32 v16, v0, 5, 2                 ; qd
        v_bfe_u32 v17, v0, 4, 1                 ; half
        v_and_b32 v18, 15, v0                   ; n
        s_cmp_lg_u32 s{sBR}, 0
        s_cbranch_scc1 {lB}
        v_lshlrev_b32 v19, 2, v15
        v_lshl_add_u32 v19, v17, 1, v19
        v_lshrrev_b32 v20, 1, v16
        v_add_u32 v19, v19, v20
        v_lshlrev_b32 v19, 9, v19
        v_and_b32 v20, 1, v16
        v_lshl_add_u32 v19, v20, 3, v19
        v_add_u32 v19, {L_KVA}, v19
        v_lshl_add_u32 v21, v18, 4, v19
        ds_write_b64 v21, v[32:33]
        v_lshl_add_u32 v21, v18, 2, v19         ; z: base + 256 + n*4 (n<2)
        v_cmp_gt_u32 vcc, 2, v18
        s_and_saveexec_b64 s[{s[2]}:{s[3]}], vcc
        ds_write_b32 v21, v35 offset:256
        s_mov_b64 exec, s[{s[2]}:{s[3]}]
        s_branch {lE}
        """)
        a.label(lB)
        a(f"""
        v_lshlrev_b32 v19, 1, v15
        v_lshrrev_b32 v20, 1, v16
        v_add_u32 v19, v19, v20
        v_lshlrev_b32 v19, 9, v19
        v_and_b32 v20, 1, v16
        v_lshl_add_u32 v20, v17, 1, v20
        v_lshl_add_u32 v19, v20, 2, v19
        v_add_u32 v19, {L_KVA}, v19
        v_lshl_add_u32 v21, v18, 4, v19
        ds_write_b32 v21, v32
        v_cmp_eq_u32 vcc, 0, v18
        s_and_saveexec_b64 s[{s[2]}:{s[3]}], vcc
        ds_write_b32 v19, v35 offset:256
        s_mov_b64 exec, s[{s[2]}:{s[3]}]
        """)
        a.label(lE)
        a("s_waitcnt lgkmcnt(0)")
        a("s_barrier")

    def o_compute(self):
        a = self.a; s = sT
        lB = self.L("oB"); lE = self.L("oE")
        a(f"""
        v_and_b32 v14, 31, v{vLANE}
        v_min_u32 v14, 16, v14
        v_lshlrev_b32 v14, 4, v14
        v_lshrrev_b32 v15, 5, v{vLANE}
        v_lshl_add_u32 v14, v15, 9, v14
        s_cmp_lg_u32 s{sBR}, 0
        s_cbranch_scc1 {lB}
        s_lshl_b32 s{s[0]}, s{sHP}, 12
        s_add_u32 s{s[0]}, s{s[0]}, {L_KVA}
        v_add_u32 v14, s{s[0]}, v14
        ds_read_b128 v[32:35], v14
        ds_read_b128 v[36:39], v14 offset:1024
        ds_read_b128 v[40:43], v14 offset:2048
        ds_read_b128 v[44:47], v14 offset:3072
        s_waitcnt lgkmcnt(2)
        v_mfma_f32_32x32x16_bf16 v[48:63], v[32:35], {vr(ACCQ)}, 0
        v_mfma_f32_32x32x16_bf16 v[48:63], v[36:39], {vr(ACCQ+4)}, v[48:63]
        s_waitcnt lgkmcnt(0)
        v_mfma_f32_32x32x16_bf16 v[64:79], v[40:43], {vr(ACCQ+8)}, 0
        v_mfma_f32_32x32x16_bf16 v[64:79], v[44:47], {vr(ACCQ+12)}, v[64:79]
        s_branch {lE}
        """)
        a.label(lB)
        a(f"""
        s_lshl_b32 s{s[0]}, s{sHP}, 11
        s_add_u32 s{s[0]}, s{s[0]}, {L_KVA}
        v_add_u32 v14, s{s[0]}, v14
        ds_read_b128 v[32:35], v14
        ds_read_b128 v[40:43], v14 offset:1024
        s_waitcnt lgkmcnt(1)
        v_mfma_f32_32x32x16_bf16 v[48:63], v[32:35], {vr(ACCQ)}, 0
        s_waitcnt lgkmcnt(0)
        v_mfma_f32_32x32x16_bf16 v[64:79], v[40:43], {vr(ACCQ+4)}, 0
        s_nop 7
        """)
        a.label(lE)
        a("s_nop 7"); a("s_nop 3")
        for D, out in ((48, 32), (64, 36)):
            a(f"v_add_f32 v14, s{sEPS}, v{D+8}")
            a(f"v_rcp_f32 v14, v14")
            for i in range(8):
                a(f"v_mul_f32 v{D+i}, v14, v{D+i}")
            for q in range(4):
                a(f"v_cvt_pk_bf16_f32 v{out+q}, v{D+2*q}, v{D+2*q+1}")
        a(f"""
        v_and_b32 v14, 31, v{vLANE}
        s_lshl_b32 s{s[0]}, s{sRG}, 5
        v_add_u32 v15, s{s[0]}, v14             ; row
        v_lshlrev_b32 v15, 7, v15
        v_bfe_u32 v16, v14, 1, 3                ; f
        v_lshrrev_b32 v17, 5, v{vLANE}          ; half
        s_lshl_b32 s{s[0]}, s{sHP}, 2
        v_add_u32 v17, s{s[0]}, v17             ; u for a=0
        v_xor_b32 v17, v17, v16
        v_lshl_add_u32 v18, v17, 4, v15
        v_xor_b32 v19, 32, v18                  ; a=1 : u+2 -> xor 2
        ds_write_b128 v18, v[32:35]
        ds_write_b128 v19, v[36:39]
        s_waitcnt lgkmcnt(0)
        s_barrier
        """)
        a(f"""
        v_lshrrev_b32 v17, 5, v{vLANE}
        v_xor_b32 v17, v17, v16
        v_lshl_add_u32 v{vXr[0]}, v17, 4, v15
        v_xor_b32 v{vXr[1]}, 32, v{vXr[0]}
        v_xor_b32 v{vXr[2]}, 64, v{vXr[0]}
        v_xor_b32 v{vXr[3]}, 96, v{vXr[0]}
        """)
        a(f"""
        v_lshlrev_b32 v14, 4, v{vLANE}
        s_lshl_b32 s{s[0]}, s{sWV}, 11
        v_add_u32 v14, s{s[0]}, v14
        ds_read_b128 v[32:35], v14
        ds_read_b128 v[36:39], v14 offset:1024
        s_lshl_b32 s{s[1]}, s{sHG}, 7
        s_waitcnt lgkmcnt(1)
        buffer_store_dwordx4 v[32:35], v{vXa}, {srd(sO)}, s{s[1]} offen sc1
        s_waitcnt lgkmcnt(0)
        buffer_store_dwordx4 v[36:39], v{vXb}, {srd(sO)}, s{s[1]} offen offset:1024 sc1
        """)

    def p3_chunk(self, t, first):
        a = self.a
        b = WF + (t & 1) * 16
        imm = (t & 3) * 16384
        for ks in range(4):
            a(f"ds_read_b128 {vr(b+4*ks)}, v{vXr[ks]} offset:{imm}")
        for ks in range(4):
            a(f"s_waitcnt lgkmcnt({3-ks})")
            c = "0" if (first and ks == 0) else vr(ACCK, 16)
            a(f"v_mfma_f32_32x32x16_bf16 {vr(ACCK,16)}, {X(t,ks)}, {vr(b+4*ks)}, {c}")

    def phase3(self):
        a = self.a; s = sT
        a(f"""
        s_waitcnt vmcnt(0)
        s_barrier
        s_lshl_b32 s{s[0]}, s{sBR}, 4
        s_add_u32 s{s[0]}, s{s[0]}, s{sRT}
        s_lshl_b32 s{s[0]}, s{s[0]}, 10         ; (br*16+rt)*8*128
        s_add_u32 s{s[0]}, s{s[0]}, {WS_FLAG}
        """)
        self.stamp()
        l1 = self.L("nofl")
        a(f"""
        s_cmp_lg_u32 s{sWV}, 0
        s_cbranch_scc1 {l1}
        s_lshl_b32 s{s[1]}, s{sHG}, 7
        s_add_u32 s{s[1]}, s{s[1]}, s{s[0]}
        v_mov_b32 v14, 0
        v_mov_b32 v15, s{sTAG}
        s_mov_b64 exec, 1
        buffer_store_dword v15, v14, {srd(sWS)}, s{s[1]} offen sc1
        s_mov_b64 exec, -1
        """)
        a.label(l1)
        self.p3_chunk(0, True)
        l2 = self.L("nopoll")
        a(f"""
        s_cmp_lg_u32 s{sWV}, 0
        s_cbranch_scc1 {l2}
        v_and_b32 v14, 7, v{vLANE}
        v_lshlrev_b32 v14, 7, v14
        """)
        self.poll("h2", f"buffer_load_dword v15, v14, {srd(sWS)}, s{s[0]} offen sc1", 15)
        a.label(l2)
        a("s_barrier")
        self.stamp()
        a(f"s_lshl_b32 s{s[2]}, s{sWV}, 11")
        for t in range(1, 8):
            a(f"""
            s_add_u32 s{s[1]}, s{sHG}, {t}
            s_and_b32 s{s[1]}, s{s[1]}, 7
            s_lshl_b32 s{s[1]}, s{s[1]}, 7
            s_add_u32 m0, s{s[2]}, {t*16384}
            s_nop 0
            buffer_load_dwordx4 v{vXa}, {srd(sO)}, s{s[1]} offen sc1 lds
            buffer_load_dwordx4 v{vXb}, {srd(sO)}, s{s[1]} offen offset:1024 sc1 lds
            """)
        self.stamp()
        for t in range(1, 8):
            a(f"s_waitcnt vmcnt({2*(7-t)})")
            a("s_barrier")
            if t in (1, 4, 7): self.stamp()
            if t == 4:
                for r in vXr: a(f"v_xor_b32 v{r}, 0x10000, v{r}")
            self.p3_chunk(t, False)
        for q in range(8):
            a(f"v_cvt_pk_bf16_f32 v{32+q}, v{ACCK+2*q}, v{ACCK+2*q+1}")
        a(f"""
        v_permlane32_swap_b32 v32, v34
        v_permlane32_swap_b32 v33, v35
        v_permlane32_swap_b32 v36, v38
        v_permlane32_swap_b32 v37, v39
        v_and_b32 v14, 31, v{vLANE}
        s_lshl_b32 s{s[0]}, s{sRT}, 7
        s_lshl_b32 s{s[1]}, s{sRG}, 5
        s_add_u32 s{s[0]}, s{s[0]}, s{s[1]}
        v_add_u32 v14, s{s[0]}, v14
        v_lshlrev_b32 v14, 11, v14
        v_lshrrev_b32 v15, 5, v{vLANE}
        v_lshl_add_u32 v14, v15, 4, v14
        s_lshl_b32 s{s[0]}, s{sBR}, 10
        s_lshl_b32 s{s[1]}, s{sHG}, 7
        s_add_u32 s{s[0]}, s{s[0]}, s{s[1]}
        s_lshl_b32 s{s[1]}, s{sHP}, 6
        s_add_u32 s{s[0]}, s{s[0]}, s{s[1]}
        buffer_store_dwordx4 v[32:35], v14, {srd(sOUT)}, s{s[0]} offen
        buffer_store_dwordx4 v[36:39], v14, {srd(sOUT)}, s{s[0]} offen offset:32
        """)
        l3 = self.L("nog")
        a(f"""
        s_or_b32 s{s[0]}, s{sRT}, s{sHG}
        s_or_b32 s{s[0]}, s{s[0]}, s{sWV}
        s_cmp_lg_u32 s{s[0]}, 0
        s_cbranch_scc1 {l3}
        s_add_u32 s{s[1]}, s{sG}, 1
        s_lshl_b32 s{s[2]}, s{sBR}, 8
        v_mov_b32 v14, 0
        v_mov_b32 v15, s{s[1]}
        s_mov_b64 exec, 1
        buffer_store_dword v15, v14, {srd(sWS)}, s{s[2]} offen
        s_mov_b64 exec, -1
        """)
        a.label(l3)

    def write_stamps(self):
        if not self.stamps: return
        a = self.a; s = sT
        a(f"""
        s_lshl_b32 s{s[0]}, s2, 3
        s_add_u32 s{s[0]}, s{s[0]}, s{sWV}
        s_lshl_b32 s{s[0]}, s{s[0]}, 8
        s_add_u32 s{s[0]}, s{s[0]}, {WS_DBG}
        v_lshlrev_b32 v14, 2, v{vLANE}
        buffer_store_dword v31, v14, {srd(sWS)}, s{s[0]} offen
        """)
        if self.dbgwg is not None:
            l = self.L("nodbg")
            a(f"""
            s_lshl_b32 s{s[0]}, s2, 3
            s_add_u32 s{s[0]}, s{s[0]}, s{sWV}
            s_cmp_lg_u32 s{s[0]}, {self.dbgwg*8}
            s_cbranch_scc1 {l}
            s_load_dwordx2 s[{s[4]}:{s[5]}], s[0:1], 64
            v_readlane_b32 s{s[8]}, v31, 0
            s_waitcnt lgkmcnt(0)
            s_mov_b32 s{s[6]}, 256
            s_mov_b32 s{s[7]}, 0x20000
            v_subrev_u32 v15, s{s[8]}, v31
            v_lshlrev_b32 v14, 2, v{vLANE}
            buffer_store_dword v15, v14, s[{s[4]}:{s[7]}], 0 offen
            """)
            a.label(l)

    def build(self):
        a = self.a
        self.stamp()
        self.prologue()
        self.stamp()
        for t in range(8):
            self.kv_round(t)
            if t in (0, 3): self.stamp()
        self.stamp()
        self.dump(0, ACCK, 32)
        self.k_epilogue()
        self.stamp()
        self.kv_mfma_publish()
        self.stamp()
        self.q_pass()
        self.dump(1, ACCQ, 16)
        a("s_barrier")
        self.stamp()
        self.hop1a()
        self.stamp()
        self.dma_wo(1, 3)
        self.q_epilogue()
        self.dump(2, ACCQ, 16)
        self.stamp()
        a("s_waitcnt vmcnt(0)")
        a("s_barrier")
        a(f"v_xor_b32 v{vWr}, 0x10000, v{vWr}")
        self.wo_regs()
        self.stamp()
        self.hop1b()
        self.stamp()
        self.o_compute()
        self.dump(3, 32, 8)
        self.stamp()
        self.phase3()
        self.stamp()
        self.write_stamps()
        a.label("L_END")
        a("s_endpgm")
        n = a.fix_hazards()
        hdr = f"""; concat_heads / hedgehog + elu linear attention block, fused persistent kernel (generated by gen.py)
; @launch grid=(256,1,1) block=(512,1,1) lds={LDS_BYTES}
.amdgcn_target "amdgcn-amd-amdhsa--gfx950"
.text
.globl {KNAME}
.p2align 8
.type {KNAME},@function
{KNAME}:
"""
        ftr = f""".section .rodata,"a"
.p2align 6
.amdhsa_kernel {KNAME}
  .amdhsa_next_free_vgpr 256
  .amdhsa_next_free_sgpr 102
  .amdhsa_accum_offset 256
  .amdhsa_group_segment_fixed_size 0
  .amdhsa_kernarg_size 80
  .amdhsa_user_sgpr_count 2
  .amdhsa_user_sgpr_kernarg_segment_ptr 1
  .amdhsa_system_sgpr_workgroup_id_x 1
.end_amdhsa_kernel
"""
        return hdr + a.text() + ftr, n

if __name__ == "__main__":
    ap = argparse.ArgumentParser()
    ap.add_argument("-o", default="concat_heads__linear_kernel_hedgehog__linear_attn_block__prompt.s")
    ap.add_argument("--norot", action="store_true")
    ap.add_argument("--debug", action="store_true")
    ap.add_argument("--stamps", action="store_true")
    ap.add_argument("--dbgwg", type=int, default=None)
    ap.add_argument("--stampsel", default=None)
    args = ap.parse_args()
    g = Gen(rot=not args.norot, debug=args.debug, stamps=args.stamps, dbgwg=args.dbgwg, stampsel=(None if args.stampsel is None else [int(x) for x in args.stampsel.split(',')]))
    txt, n = g.build()
    open(args.o, "w").write(txt)
    print(f"wrote {args.o}: {len(txt)} bytes, {n} hazard nops inserted")
```
